```python
import torch

def _softmax(x, axis=-1):
    return torch.softmax(x, dim=axis)
def _gelu(x):
    return torch.nn.functional.gelu(x, approximate="tanh")
def _silu(x):
    return torch.nn.functional.silu(x)
def _sigmoid(x):
    return torch.sigmoid(x)
def _layernorm(x, axis=-1, eps=1e-5):
    m = x.mean(dim=axis, keepdim=True)
    v = x.var(dim=axis, keepdim=True, unbiased=False)
    return (x - m) / torch.sqrt(v + eps)
def _scatter_add(tgt, idx, src, axis=0):
    return tgt.clone().index_add_(axis, idx, src)
def _segment_sum(src, seg, n):
    out = torch.zeros((n,) + src.shape[1:], dtype=src.dtype)
    return out.index_add_(0, seg, src)
def _pad(x, pw):
    flat = tuple(v for pair in reversed(pw) for v in pair)
    return torch.nn.functional.pad(x, flat)

kernel_name = 'gated_mix__mha_block__glu_gated_bilinear__prompt'

def setup_inputs():

    _w = (lambda a: (lambda t: t.to(torch.bfloat16) if t.is_floating_point() else t)(torch.as_tensor(a)))
    def _A_setup():
        B, S, D, H = 1, 2048, 640, 32
        return {
            "x": _w((lambda *s: torch.randn(*s, dtype=torch.bfloat16) * 0.05)(B, S, D)),
            "wqkv": _w((lambda *s: torch.randn(*s, dtype=torch.bfloat16) * 0.8)(D, 3 * D)),
            "wo": _w((lambda *s: torch.randn(*s, dtype=torch.bfloat16) * 0.05)(D, D)),
        }
    _A_in = _A_setup()

    def _B_setup():
        B, S, D, F = 1, 2048, 640, 1728
        return {
            "x": _w((lambda *s: torch.randn(*s, dtype=torch.bfloat16) * 0.05)(B, S, D)),
            "w_gate": _w((lambda *s: torch.randn(*s, dtype=torch.bfloat16) * 1.6)(D, F) * (D ** -0.5)),
            "w_up": _w((lambda *s: torch.randn(*s, dtype=torch.bfloat16) * 1.6)(D, F) * (D ** -0.5)),
            "w_down": _w((lambda *s: torch.randn(*s, dtype=torch.bfloat16) * 1.6)(F, D) * (F ** -0.5)),
        }
    _B_in = _B_setup()

    return {
        "A_x": _A_in["x"],
        "A_wqkv": _A_in["wqkv"],
        "A_wo": _A_in["wo"],
        "B_x": _B_in["x"],
        "B_w_gate": _B_in["w_gate"],
        "B_w_up": _B_in["w_up"],
        "B_w_down": _B_in["w_down"],
        "gate_w": _w((lambda *s: torch.randn(*s, dtype=torch.bfloat16) * 0.05)(640) * 16.0),
    }

def reference(A_x, A_wqkv, A_wo, B_x, B_w_gate, B_w_up, B_w_down, gate_w):
    def _A_ref(x, wqkv, wo):
        B, S, D = x.shape
        H = 32
        Dh = D // H
        qkv = (lambda x, *d: x.permute(*d))((x @ wqkv).reshape(B, S, 3, H, Dh), 2, 0, 3, 1, 4)
        q, k, v = qkv[0], qkv[1], qkv[2]
        scores = torch.einsum("bhqd,bhkd->bhqk", q, k) * (Dh ** -0.5)
        p = _softmax(scores, axis=-1)
        o = torch.einsum("bhqk,bhkd->bhqd", p, v)
        return (lambda x, *d: x.permute(*d))(o, 0, 2, 1, 3).reshape(B, S, D) @ wo

    def _B_ref(x, w_gate, w_up, w_down):
        g = torch.einsum("bsd,df->bsf", x, w_gate)
        u = torch.einsum("bsd,df->bsf", x, w_up)
        h = g * u
        return torch.einsum("bsf,fd->bsd", h, w_down)

    x = A_x
    g = _sigmoid((x * gate_w).sum(-1, keepdims=True))
    a = _A_ref(x, A_wqkv, A_wo)
    b = _B_ref(x, B_w_gate, B_w_up, B_w_down)
    return g * a + (1 - g) * b
```

```python
import re

def v(n, c=1):
    return f"v{n}" if c == 1 else f"v[{n}:{n + c - 1}]"
def s(n, c=1):
    return f"s{n}" if c == 1 else f"s[{n}:{n + c - 1}]"
def a(n, c=1):
    return f"a{n}" if c == 1 else f"a[{n}:{n + c - 1}]"

TRANS = ("v_exp_f32", "v_log_f32", "v_rcp_f32", "v_rsq_f32", "v_sqrt_f32", "v_sin_f32", "v_cos_f32", "v_rcp_iflag_f32")
REG = re.compile(r"^(-|\|)?(abs\()?([vas])(\d+|\[(\d+):(\d+)\])\)?\|?$")

def regs_of(op):
    op = op.strip()
    if op in ("vcc", "vcc_lo", "vcc_hi"): return {("s", "vcc")}
    if op in ("exec", "exec_lo", "exec_hi"): return {("s", "exec")}
    if op == "m0": return {("s", "m0")}
    m = REG.match(op)
    if not m: return set()
    k = m.group(3)
    if m.group(5) is not None:
        return {(k, i) for i in range(int(m.group(5)), int(m.group(6)) + 1)}
    return {(k, int(m.group(4)))}

class I:
    __slots__ = ("text", "mn", "ops", "mods", "rd", "wr", "kind", "passes", "srcc", "srcab", "states", "label", "target", "data")
    def __init__(self, text):
        self.text = text
        t = text.split(";")[0].strip()
        self.label = None; self.target = None
        self.rd = set(); self.wr = set(); self.kind = "other"; self.passes = 0
        self.srcc = set(); self.srcab = set(); self.states = 1; self.data = set()
        self.mn = ""; self.ops = []; self.mods = ""
        if not t or t.startswith("."):
            self.kind = "dir"; self.states = 0; return
        if t.endswith(":"):
            self.kind = "label"; self.label = t[:-1]; self.states = 0; return
        parts = t.split(None, 1)
        mn = parts[0]; self.mn = mn
        rest = parts[1] if len(parts) > 1 else ""
        ops = [o.strip() for o in re.split(r",(?![^\[]*\])", rest)] if rest else []
        if ops:
            last = ops[-1].split(None, 1)
            ops[-1] = last[0] if last else ""
            self.mods = last[1] if len(last) > 1 else ""
        self.ops = ops
        R = [regs_of(o) for o in ops]
        U = lambda xs: set().union(*xs) if xs else set()
        base = re.sub(r"_(e32|e64|dpp|sdwa)$", "", mn)
        if mn.startswith("v_mfma"):
            self.kind = "mfma"
            self.passes = 16 if ("32x32x4" in mn or "2b" in mn) else (8 if "32x32" in mn else 4)
            self.wr = R[0]; self.srcab = R[1] | R[2]; self.srcc = R[3]; self.rd = self.srcab | self.srcc
        elif mn.startswith("v_"):
            self.kind = "valu"
            if base in TRANS: self.kind = "trans"
            if "permlane" in mn and "swap" in mn:
                self.wr = R[0] | R[1]; self.rd = R[0] | R[1]; self.kind = "permlane"
            elif base.startswith("v_readfirstlane") or base.startswith("v_readlane"):
                self.wr = R[0]; self.rd = U(R[1:]); self.kind = "readlane"
            elif base.startswith("v_cmp"):
                self.wr = R[0]; self.rd = U(R[1:])
            elif base in ("v_add_co_u32", "v_sub_co_u32", "v_addc_co_u32", "v_subb_co_u32"):
                self.wr = R[0] | R[1]; self.rd = U(R[2:])
            else:
                self.wr = R[0]; self.rd = U(R[1:])
                if base.startswith(("v_fmac", "v_dot2c", "v_pk_fmac", "v_writelane")): self.rd |= R[0]
                if base == "v_cndmask_b32" and len(ops) == 3: self.rd |= {("s", "vcc")}
            if "row_" in self.mods or "quad_perm" in self.mods or mn.endswith("_dpp"):
                self.kind = "dpp"
                self.rd |= R[0]
        elif mn.startswith("ds_"):
            self.kind = "ds"
            if mn.startswith(("ds_read", "ds_bpermute", "ds_permute", "ds_swizzle")):
                self.wr = R[0]; self.rd = U(R[1:])
            else:
                self.rd = U(R)
        elif mn.startswith(("buffer_", "global_")):
            self.kind = "vmem"
            islds = re.search(r"\blds\b", self.mods) or "load_lds" in mn
            if mn in ("buffer_wbl2", "buffer_inv"):
                pass
            elif islds:
                self.rd = U(R) | {("s", "m0")}; self.kind = "dma"
            elif "load" in mn:
                self.wr = R[0]; self.rd = U(R[1:])
            elif "atomic" in mn:
                self.rd = U(R)
                if "sc0" in self.mods: self.wr = R[0]
            else:
                self.rd = U(R)
                if mn.endswith(("x3", "x4")):
                    self.data = R[0] if mn.startswith("buffer_") else R[1]
        elif mn.startswith("s_"):
            self.kind = "salu"
            if mn == "s_nop": self.states = int(ops[0], 0) + 1
            elif mn.startswith(("s_branch", "s_cbranch")):
                self.kind = "branch"; self.target = ops[0]
            elif mn == "s_endpgm": self.kind = "end"
            elif mn.startswith(("s_cmp", "s_waitcnt", "s_barrier", "s_setprio", "s_sleep", "s_bitcmp")):
                self.rd = U(R)
            else:
                self.wr = R[0] if R else set(); self.rd = U(R[1:])
                if "saveexec" in mn: self.wr |= {("s", "exec")}
        else:
            raise ValueError("unknown instruction: " + text)

VALUISH = ("valu", "trans", "permlane", "readlane", "dpp")
def isv(r): return r[0] in ("v", "a")

def need(p, c):
    n = 0
    pv = p.kind in VALUISH
    cv = c.kind in VALUISH
    if pv:
        wv = {r for r in p.wr if isv(r)}
        ws = {r for r in p.wr if not isv(r)}
        if c.kind == "mfma" and wv & c.rd: n = max(n, 2)
        if c.kind == "permlane" and wv & c.rd: n = max(n, 2)
        if c.kind == "dpp" and wv & c.rd: n = max(n, 2)
        if c.kind == "readlane" and wv & c.rd: n = max(n, 1)
        if p.kind == "trans" and cv and c.kind != "trans" and wv & c.rd: n = max(n, 1)
        if p.kind == "trans" and c.kind in ("vmem", "ds", "dma") and wv & c.rd: n = max(n, 1)
        if ws:
            if cv and ws & c.rd: n = max(n, 4 if c.kind == "readlane" else 2)
            if c.kind in ("vmem", "dma") and ws & c.rd: n = max(n, 5)
            if c.kind in ("salu", "branch") and (ws & c.rd or (c.kind == "branch" and "vcc" in c.mn and ("s", "vcc") in ws)): n = max(n, 1)
    if p.kind == "mfma":
        P = p.passes
        far = {4: 8, 8: 12, 16: 20}[P]
        if c.kind == "mfma":
            if p.wr & c.srcab: n = max(n, far)
            if p.wr & c.srcc:
                if not (p.wr == c.srcc and c.passes == P): n = max(n, far - 2)
        elif cv:
            if p.wr & (c.rd | c.wr): n = max(n, far)
            if p.srcc & c.wr: n = max(n, {4: 3, 8: 7, 16: 15}[P])
        elif c.kind in ("vmem", "ds", "dma"):
            if p.wr & (c.rd | c.wr): n = max(n, far)
    if p.kind == "salu" and ("s", "m0") in p.wr and c.kind == "dma": n = max(n, 1)
    if p.data and p.data & c.wr: n = max(n, 2 if cv else 1)
    return n

MAXD = 21
def fix_hazards(lines, verbose=False):
    ins = [I(l) for l in lines]
    total = 0
    def cfg():
        labels = {x.label: i for i, x in enumerate(ins) if x.kind == "label"}
        preds = {}
        for i, x in enumerate(ins):
            if x.kind == "branch" and x.target in labels:
                preds.setdefault(labels[x.target], []).append(i)
        return preds
    while True:
        changed = False
        preds = cfg()
        i = 0
        while i < len(ins):
            c = ins[i]
            if c.kind in ("dir", "label") or (c.kind == "salu" and c.mn in ("s_nop", "s_waitcnt", "s_barrier", "s_setprio")):
                i += 1; continue
            worst = 0; why = ""
            stack = [(i - 1, 0, False)]
            seen = set()
            while stack:
                j, d, jumped = stack.pop()
                while j >= 0 and d < MAXD:
                    if (j, d) in seen: break
                    seen.add((j, d))
                    p = ins[j]
                    if p.kind == "label":
                        for b in preds.get(j, []): stack.append((b, d, True))
                        j -= 1; continue
                    if not jumped and (p.kind == "end" or p.mn == "s_branch"): break
                    jumped = False
                    if p.kind != "dir":
                        k = need(p, c) - d
                        if k > worst:
                            worst = k; why = p.text
                        d += p.states
                    j -= 1
            if worst > 0:
                if verbose: print(f"  nop {worst}: [{why.strip()}] -> [{c.text.strip()}]")
                w = worst
                while w > 0:
                    k = min(w, 16)
                    ins.insert(i, I(f"    s_nop {k - 1}"))
                    i += 1; w -= k; total += 1
                preds = cfg()
                changed = True
            i += 1
        if not changed: break
    return [x.text for x in ins], total

class K:
    def __init__(self):
        self.l = []
    def __call__(self, *xs):
        for x in xs:
            if isinstance(x, (list, tuple)): self(*x)
            else:
                for ln in x.split("\n"):
                    ln = ln.rstrip()
                    if ln.strip():
                        self.l.append(ln if ln.strip().endswith(":") or ln.startswith(".") else "    " + ln.strip())
    def label(self, n): self.l.append(n + ":")
```

```python
import sys, math
sys.path.insert(0, "dev")
from asmlib import *

NAME = "gated_mix__mha_block__glu_gated_bilinear__prompt"
S, D, H, DH, F = 2048, 640, 32, 20, 1728
TILEB = 2624
HEADB = 64 * TILEB
KV_OFF = 0
QTILE = 1280
QHEAD = 64 * QTILE
Q_OFF = 0x600000
G_OFF = 0x900000
HO_OFF = 0xA00000
HO_ROW = 74 * 1024
HO_SIZE = 128 * HO_ROW
QSCALE = math.log2(math.e) / math.sqrt(DH)

def f32(x):
    import struct
    return "0x%08x" % struct.unpack("<I", struct.pack("<f", x))[0]

sX, sWQKV, sWO, sWG, sWU, sWD, sGW, sOUT, sDBG, sWS = 4, 6, 8, 12, 14, 16, 18, 20, 22, 24

def load_args(k):
    k(f"s_load_dwordx16 s[4:19], s[0:1], 0",
      f"s_load_dwordx4 s[20:23], s[0:1], 64",
      f"s_load_dwordx2 s[24:25], s[0:1], 80")

def srd(k, d, ptr, size, off=0, soff=None):
    if off or soff is not None:
        if soff is not None and off:
            k(f"s_add_u32 s{d}, s{ptr}, s{soff}", f"s_addc_u32 s{d+1}, s{ptr+1}, 0",
              f"s_add_u32 s{d}, s{d}, {off}", f"s_addc_u32 s{d+1}, s{d+1}, 0")
        elif soff is not None:
            k(f"s_add_u32 s{d}, s{ptr}, s{soff}", f"s_addc_u32 s{d+1}, s{ptr+1}, 0")
        else:
            k(f"s_add_u32 s{d}, s{ptr}, {off}", f"s_addc_u32 s{d+1}, s{ptr+1}, 0")
    else:
        k(f"s_mov_b32 s{d}, s{ptr}", f"s_mov_b32 s{d+1}, s{ptr+1}")
    k(f"s_mov_b32 s{d+2}, {size}", f"s_mov_b32 s{d+3}, 0x00020000")

def csel(d, a_, b_):
    return [f"s_mov_b32 s{d}, {b_}", f"s_cmov_b32 s{d}, {a_}"]

def spread(mf, fill, lead=1):
    out = []
    n = len(mf)
    per = -(-len(fill) // n) if fill else 0
    fi = 0
    for j, m in enumerate(mf):
        out.append(m)
        take = per if j < n - 1 else len(fill) - fi
        out += fill[fi:fi + take]; fi += take
    return out

def gemm_loop(k, nst, nsteps, nslots, ndma, dma, reads, mfmas, extra_vm=0):
    for st in range(min(nslots, nst)):
        k(dma(st))
    k(f"s_waitcnt vmcnt({(min(nslots, nst) - 1) * ndma})", "s_barrier")
    k(reads(0, 0, 0))
    buf = 0
    for st in range(nst):
        for step in range(nsteps):
            first = st == 0 and step == 0
            if step == nsteps - 1 and st + 1 < nst:
                allowed = (min(st + nslots - 1, nst - 1) - (st + 1)) * ndma
                k(f"s_waitcnt vmcnt({allowed}) lgkmcnt(0)", "s_barrier")
                fill = reads(st + 1, 0, buf ^ 1) + (dma(st + nslots) if st + nslots < nst else [])
            elif step < nsteps - 1:
                k("s_waitcnt lgkmcnt(0)")
                fill = reads(st, step + 1, buf ^ 1)
            else:
                k("s_waitcnt lgkmcnt(0)")
                fill = []
            k(spread(mfmas(buf, first), fill))
            buf ^= 1

def mfma32(d, a_, b_, first):
    return f"v_mfma_f32_32x32x16_bf16 {v(d,16)}, {v(a_,4)}, {v(b_,4)}, {'0' if first else v(d,16)}"
def mfma16(d, a_, b_, first):
    return f"v_mfma_f32_16x16x32_bf16 {v(d,4)}, {v(a_,4)}, {v(b_,4)}, {'0' if first else v(d,4)}"

def wave_ids(k, sw, vl):
    k(f"v_lshrrev_b32 v1, 6, v0", f"v_and_b32 v{vl}, 63, v0", f"v_readfirstlane_b32 s{sw}, v1")

def gen_qkv(NW=4):
    k = K()
    NT = 2 if NW == 4 else 1
    PX = 16 // NW
    sW = 26
    RX, RW, RO = 28, 32, 36
    sRB, sCB, sM0X, sM0W, sKX, sKW, sT, sT2, sSEC = 40, 41, 42, 43, 44, 45, 46, 47, 48
    vL = 2
    XF, WF = 16, 32
    XA, WA, DX, DW = 48, 52, 54, 58
    ACC = 64
    load_args(k)
    wave_ids(k, sW, vL)
    k("s_cmp_ge_u32 s2, 256", "s_cbranch_scc1 Lq_end")
    k("s_cmp_ge_u32 s2, 240", "s_cbranch_scc1 Lq_misc")
    k(f"s_and_b32 s{sT}, s2, 7", f"s_lshr_b32 s{sT2}, s2, 3",
      f"s_lshr_b32 s{sCB}, s{sT}, 2", f"s_mul_i32 s{sCB}, s{sCB}, 30", f"s_add_u32 s{sCB}, s{sCB}, s{sT2}",
      f"s_and_b32 s{sRB}, s{sT}, 3", f"s_lshl_b32 s{sRB}, s{sRB}, 2", f"s_and_b32 s{sT2}, s{sCB}, 3",
      f"s_add_u32 s{sRB}, s{sRB}, s{sT2}", f"s_lshr_b32 s{sCB}, s{sCB}, 2")
    k(f"v_lshrrev_b32 v3, 3, v{vL}",
      f"v_lshrrev_b32 v4, 4, v{vL}",
      f"v_and_b32 v5, 7, v{vL}",
      f"v_and_b32 v6, 15, v{vL}")
    k(f"s_mul_i32 s{sT}, s{sW}, {PX}")
    for j in range(PX):
        k(f"s_add_u32 s{sT2}, s{sT}, {j}",
          f"s_lshl_b32 s49, s{sT2}, 2",
          f"v_add_u32 v7, s49, v4", f"v_and_b32 v7, 7, v7", f"v_xor_b32 v7, v7, v5", f"v_lshlrev_b32 v7, 4, v7",
          f"s_lshl_b32 s49, s{sT2}, 3", f"s_lshl_b32 s50, s{sRB}, 7", f"s_add_u32 s49, s49, s50",
          f"v_add_u32 v8, s49, v3", f"v_mul_u32_u24 v8, 1280, v8", f"v_add_u32 v7, v7, v8",
          f"v_subrev_u32 v{DX+j}, {1024*j}, v7" if j else f"v_mov_b32 v{DX}, v7")
        k(f"v_lshlrev_b32 v7, 2, v4", f"v_xor_b32 v7, v7, v6", f"v_lshlrev_b32 v7, 4, v7",
          f"s_lshl_b32 s49, s{sT2}, 2", f"v_add_u32 v8, s49, v4", f"v_mul_u32_u24 v8, 3840, v8",
          f"s_lshl_b32 s50, s{sCB}, 8", f"v_add3_u32 v7, v7, v8, s50",
          f"v_subrev_u32 v{DW+j}, {1024*j}, v7" if j else f"v_mov_b32 v{DW}, v7")
    k(f"s_lshl_b32 s{sM0X}, s{sT}, 10", f"s_add_u32 s{sM0W}, s{sM0X}, 65536")
    k("s_waitcnt lgkmcnt(0)")
    srd(k, RX, sX, S * D * 2)
    srd(k, RW, sWQKV, D * 3 * D * 2)
    def dma(st):
        slot = st % 4
        o = [f"s_add_u32 m0, s{sM0X}, {slot*16384}", f"s_mov_b32 s{sKX}, {st*128}"]
        o += [f"buffer_load_dwordx4 v{DX+j}, {s(RX,4)}, s{sKX} offen offset:{1024*j} lds" for j in range(PX)]
        o += [f"s_add_u32 m0, s{sM0W}, {slot*16384}", f"s_mov_b32 s{sKW}, {st*64*3840}"]
        o += [f"buffer_load_dwordx4 v{DW+j}, {s(RW,4)}, s{sKW} offen offset:{1024*j} lds" for j in range(PX)]
        return o
    pre = [dma(st) for st in range(4)]
    for p in pre: k(p)
    wm = f"s_lshr_b32 s{sT}, s{sW}, {1 if NW == 4 else 2}"
    wn = f"s_and_b32 s{sT2}, s{sW}, {1 if NW == 4 else 3}"
    k(wm, wn)
    k(f"v_and_b32 v3, 31, v{vL}", f"v_lshrrev_b32 v4, 5, v{vL}",
      f"s_lshl_b32 s49, s{sT}, 6", f"v_add_u32 v5, s49, v3",
      f"v_bfe_u32 v6, v5, 1, 3", f"v_lshlrev_b32 v5, 7, v5")
    for st_ in range(4):
        k(f"v_or_b32 v7, {2*st_}, v4", f"v_xor_b32 v7, v7, v6", f"v_lshl_add_u32 v{XA+st_}, v7, 4, v5")
    k(f"v_bfe_u32 v5, v{vL}, 2, 2",
      f"v_lshl_add_u32 v6, v4, 3, v5", f"v_lshlrev_b32 v6, 8, v6",
      f"v_bfe_u32 v7, v{vL}, 4, 1", f"v_lshl_add_u32 v6, v7, 5, v6",
      f"v_and_b32 v7, 3, v{vL}", f"v_lshl_add_u32 v6, v7, 3, v6", f"v_add_u32 v6, 65536, v6")
    for nt in range(NT):
        k(f"s_mul_i32 s49, s{sT2}, {NT}", f"s_add_u32 s49, s49, {nt}",
          f"v_xor_b32 v7, s49, v5", f"v_lshl_add_u32 v{WA+nt}, v7, 6, v6")
    def reads(st, step, buf):
        slot = st % 4
        o = []
        for t in range(2):
            o.append(f"ds_read_b128 {v(XF+buf*8+t*4,4)}, v{XA+step} offset:{slot*16384+t*4096}")
            if t < NT:
                for half in range(2):
                    o.append(f"ds_read_b64_tr_b16 {v(WF+buf*8+t*4+half*2,2)}, v{WA+t} offset:{slot*16384+(16*step+4*half)*256}")
        return o
    def mk_mfmas(tok_is_n):
        def f(buf, first):
            o = []
            for mt, nt in ([(0,0),(1,0),(1,1),(0,1)] if NT == 2 else [(0,0),(1,0)]):
                x_, w_ = XF+buf*8+mt*4, WF+buf*8+nt*4
                o.append(mfma32(ACC+(mt*NT+nt)*16, *((w_, x_) if tok_is_n else (x_, w_)), first))
            return o
        return f
    nodma = lambda st: [] if st < 4 else dma(st)
    k(f"s_cmp_ge_u32 s{sCB}, 10", "s_cbranch_scc1 Lq_v")
    gemm_loop(k, 10, 4, 4, 2 * PX, nodma, reads, mk_mfmas(True))
    k(f"s_cmp_ge_u32 s{sCB}, 5", f"s_cselect_b32 s{sSEC}, 1, 0",
      csel(49, KV_OFF, Q_OFF), csel(50, HEADB, QHEAD), csel(51, TILEB, QTILE), csel(52, "1.0", f32(QSCALE)),
      f"s_mul_i32 s53, s{sSEC}, 5", f"s_sub_u32 s53, s{sCB}, s53")
    k(f"s_lshl_b32 s54, s50, 5")
    k(f"s_add_u32 s{RO}, s{sWS}, s49", f"s_addc_u32 s{RO+1}, s{sWS+1}, 0", f"s_mov_b32 s{RO+2}, s54", f"s_mov_b32 s{RO+3}, 0x00020000")
    k(f"s_lshl_b32 s55, s{sRB}, 2", f"s_lshl_b32 s56, s{sT}, 1", f"s_add_u32 s55, s55, s56", f"s_mul_i32 s55, s55, s51", f"s_add_u32 s56, s55, s51")
    k(f"s_mov_b32 s57, 52429")
    for nt in range(NT):
        for i in range(4):
            A = 16 + nt * 4 + i
            k(f"s_lshl_b32 s58, s53, 2", f"s_mul_i32 s59, s{sT2}, {NT}", f"s_add_u32 s58, s58, s59", f"s_lshl_b32 s58, s58, 3",
              f"s_add_u32 s58, s58, {8*nt + 2*i}",
              f"v_add_u32 v5, s58, v4", f"v_mul_u32_u24 v6, s57, v5", f"v_lshrrev_b32 v6, 18, v6",
              f"v_mul_u32_u24 v7, 5, v6", f"v_sub_u32 v5, v5, v7",
              f"v_lshrrev_b32 v7, 1, v5", f"v_lshlrev_b32 v7, 9, v7", f"v_and_b32 v8, 1, v5", f"v_lshl_add_u32 v7, v8, 3, v7",
              f"v_cmp_eq_u32 vcc, 4, v5", f"v_lshlrev_b32 v8, 4, v3", f"v_lshlrev_b32 v9, 3, v3",
              f"v_cndmask_b32 v8, v8, v9, vcc", f"v_mul_lo_u32 v6, v6, s50", f"v_add3_u32 v{A}, v6, v7, v8")
    for mt in range(2):
        for nt in range(NT):
            base = ACC + (mt*NT+nt)*16
            for i in range(4):
                r = base + 4*i
                t = 32 + ((mt*NT+nt)*4 + i) * 2 % 16
                k([f"v_mul_f32 v{r+c}, s52, v{r+c}" for c in range(4)])
                k(f"v_cvt_pk_bf16_f32 v{t}, v{r}, v{r+1}", f"v_cvt_pk_bf16_f32 v{t+1}, v{r+2}, v{r+3}",
                  f"buffer_store_dwordx2 {v(t,2)}, v{16+nt*4+i}, {s(RO,4)}, s{55+mt} offen")
    k("s_endpgm")
    k.label("Lq_v")
    gemm_loop(k, 10, 4, 4, 2 * PX, nodma, reads, mk_mfmas(False))
    srd(k, RO, sWS, 32 * HEADB, KV_OFF)
    k(f"s_sub_u32 s53, s{sCB}, 10",
      f"s_lshl_b32 s55, s{sRB}, 2", f"s_lshl_b32 s56, s{sT}, 1", f"s_add_u32 s55, s55, s56", f"s_mul_i32 s55, s55, {TILEB}", f"s_add_u32 s56, s55, {TILEB}",
      f"s_mov_b32 s57, 3277", f"s_mov_b32 s50, {HEADB}")
    for nt in range(NT):
        k(f"s_lshl_b32 s58, s53, 2", f"s_mul_i32 s59, s{sT2}, {NT}", f"s_add_u32 s58, s58, s59", f"s_add_u32 s58, s58, {nt}", f"s_lshl_b32 s58, s58, 5",
          f"v_add_u32 v5, s58, v3", f"v_mul_u32_u24 v6, s57, v5", f"v_lshrrev_b32 v6, 16, v6",
          f"v_mul_u32_u24 v7, 20, v6", f"v_sub_u32 v5, v5, v7", f"v_lshlrev_b32 v5, 4, v5",
          f"v_mul_u32_u24 v7, 336, v4", f"v_mul_lo_u32 v6, v6, s50", f"v_add3_u32 v{16+nt}, v5, v6, v7")
    for mt in range(2):
        for nt in range(NT):
            base = ACC + (mt*NT+nt)*16
            for t in range(2):
                tt = 32 + (((mt*NT+nt)*2 + t) % 4) * 4
                k([f"v_cvt_pk_bf16_f32 v{tt+c}, v{base+8*t+2*c}, v{base+8*t+2*c+1}" for c in range(4)])
                k(f"buffer_store_dwordx4 {v(tt,4)}, v{16+nt}, {s(RO,4)}, s{55+mt} offen offset:{1280+672*t}")
    k("s_endpgm")
    k.label("Lq_misc")
    k("s_waitcnt lgkmcnt(0)")
    srd(k, RX, sX, S * D * 2)
    srd(k, RW, sGW, D * 2)
    srd(k, RO, sWS, 32 * HEADB, KV_OFF)
    srd(k, 52, sWS, S * 4, G_OFF)
    k(f"s_sub_u32 s{sT}, s2, 240")
    RPW = 128 // NW
    k(f"v_and_b32 v3, 15, v{vL}", f"v_lshrrev_b32 v4, 4, v{vL}", f"v_lshlrev_b32 v5, 4, v3")
    for u in range(5):
        k(f"buffer_load_dwordx4 {v(8+4*u,4)}, v5, {s(RW,4)}, 0 offen offset:{256*u}")
    k(f"s_lshl_b32 s49, s{sT}, 7", f"s_mul_i32 s50, s{sW}, {RPW}", f"s_add_u32 s49, s49, s50",
      f"v_add_u32 v6, s49, v4", f"v_lshlrev_b32 v7, 2, v6", f"v_mul_u32_u24 v6, 1280, v6", f"v_add_u32 v6, v6, v5")
    k(f"v_mov_b32 v28, 0x3f803f80", "v_mov_b32 v29, v28", "v_mov_b32 v30, v28", "v_mov_b32 v31, v28")
    k(f"v_bfe_u32 v112, v0, 2, 6", f"v_mul_u32_u24 v112, {TILEB}, v112", f"v_and_b32 v113, 3, v0", f"v_mul_u32_u24 v113, 336, v113",
      f"v_lshrrev_b32 v114, 8, v0", f"s_mov_b32 s50, {HEADB}", f"v_mul_lo_u32 v114, v114, s50", f"v_add3_u32 v112, v112, v113, v114",
      f"s_mul_i32 s51, s{sT}, {2*HEADB}")
    k(f"buffer_store_dwordx4 v[28:31], v112, {s(RO,4)}, s51 offen offset:{1280+320}")
    if NW == 4:
        k(f"s_add_u32 s51, s51, {HEADB}", f"buffer_store_dwordx4 v[28:31], v112, {s(RO,4)}, s51 offen offset:{1280+320}")
    npass = RPW // 4
    for b0 in range(0, npass, 4):
        for p in range(4):
            k(f"s_mov_b32 s50, {(b0+p)*4*1280}")
            for u in range(5):
                k(f"buffer_load_dwordx4 {v(32+p*20+4*u,4)}, v6, {s(RX,4)}, s50 offen offset:{256*u}")
        for p in range(4):
            k(f"s_waitcnt vmcnt({15-5*p})")
            acc = 112 + p
            k(f"v_mov_b32 v{acc}, 0")
            for u in range(20):
                k(f"v_dot2c_f32_bf16 v{acc}, v{32+p*20+u}, v{8+u}")
        for p in range(4):
            acc = 112 + p
            k("s_nop 2")
            for sh in (8, 4, 2, 1):
                k(f"v_add_f32 v{acc}, v{acc}, v{acc} row_ror:{sh} row_mask:0xf bank_mask:0xf")
            k(f"v_mul_f32 v{acc}, {f32(-math.log2(math.e))}, v{acc}", f"v_exp_f32 v{acc}, v{acc}", f"v_add_f32 v{acc}, 1.0, v{acc}",
              f"v_rcp_f32 v{acc}, v{acc}",
              f"buffer_store_dword v{acc}, v7, s[52:55], 0 offen offset:{(b0+p)*16}")
        k("s_waitcnt vmcnt(0)")
    k.label("Lq_end")
    k("s_endpgm")
    return k.l, dict(grid=256, block=64*NW, lds=131072, vgpr=128)

SLOT = 8 * TILEB
def gen_attn(k):
    sW = 26
    RKV, RQ, RG, RO = 28, 32, 36, 40
    sHEAD, sQB, sT, sT2, sM0, sSO, sCNT, sDEL, sSLOT, sQT = 44, 45, 46, 47, 48, 49, 50, 51, 52, 53
    sHI = 54
    vL, vR, vHI, vDA, vG = 2, 3, 4, 5, 6
    AK, AH, AV, BK, BH, BV = 8, 9, 10, 11, 12, 13
    Q1, Q2, KL, KH, V1, V2, P = 16, 20, 24, 28, 32, 36, 40
    O, S0, S1 = 48, 64, 80
    T0 = 96
    k(f"s_and_b32 s{sT}, s2, 7", f"s_lshl_b32 s{sT}, s{sT}, 2", f"s_bfe_u32 s{sT2}, s2, 0x20003",
      f"s_add_u32 s{sHEAD}, s{sT}, s{sT2}", f"s_lshr_b32 s{sQB}, s2, 5",
      f"s_lshl_b32 s{sQT}, s{sQB}, 3", f"s_add_u32 s{sQT}, s{sQT}, s{sW}")
    k(f"v_and_b32 v{vR}, 31, v{vL}", f"v_lshrrev_b32 v{vHI}, 5, v{vL}", f"v_lshlrev_b32 v{vDA}, 4, v{vL}")
    k(f"s_mul_i32 s{sM0}, s{sW}, {TILEB}", f"s_mov_b32 s{sSO}, s{sM0}")
    k(f"s_mul_i32 s{sT}, s{sHEAD}, {HEADB}", f"s_mul_i32 s{sT2}, s{sHEAD}, {QHEAD}")
    k("s_waitcnt lgkmcnt(0)")
    srd(k, RKV, sWS, HEADB, KV_OFF, sT)
    srd(k, RQ, sWS, QHEAD, Q_OFF, sT2)
    srd(k, RG, sWS, S * 4, G_OFF)
    srd(k, RO, sWS, HO_SIZE, HO_OFF)
    def dma():
        return [f"buffer_load_dwordx4 v{vDA}, {s(RKV,4)}, s{sSO} offen offset:{o} lds" for o in (0, 1024, 1600)]
    k(f"s_mov_b32 m0, s{sM0}", dma())
    k(f"s_mul_i32 s{sT}, s{sQT}, {QTILE}", f"v_lshlrev_b32 v7, 3, v{vR}", f"v_lshlrev_b32 v14, 2, v{vR}", f"s_lshl_b32 s{sT2}, s{sQT}, 7")
    k(f"buffer_load_dwordx4 {v(Q1,4)}, v{vDA}, {s(RQ,4)}, s{sT} offen",
      f"buffer_load_dwordx2 {v(Q2,2)}, v7, {s(RQ,4)}, s{sT} offen offset:1024",
      f"buffer_load_dword v{vG}, v14, {s(RG,4)}, s{sT2} offen")
    k(f"s_add_u32 m0, s{sM0}, {SLOT}", f"s_add_u32 s{sSO}, s{sSO}, {SLOT}", dma())
    k(f"v_mov_b32 v{AK}, v{vDA}", f"v_add_u32 v{AH}, 1024, v7",
      f"v_mul_u32_u24 v{AV}, 336, v{vHI}", f"v_lshl_add_u32 v{AV}, v{vR}, 4, v{AV}", f"v_add_u32 v{AV}, 1280, v{AV}",
      f"v_add_u32 v{BK}, {SLOT}, v{AK}", f"v_add_u32 v{BH}, {SLOT}, v{AH}", f"v_add_u32 v{BV}, {SLOT}, v{AV}")
    k(f"v_cmp_eq_u32 {s(sHI,2)}, 0, v{vHI}")
    k(f"v_mov_b32 v{KH+2}, 0x3f80", f"v_mov_b32 v{KH+3}, 0", f"v_mov_b32 v{Q2+2}, 0", f"v_mov_b32 v{Q2+3}, 0")
    k([f"v_mov_b32 v{O+i}, 0" for i in range(16)])
    k([f"v_mov_b32 v{P+i}, 0" for i in range(4, 8)], [f"v_mov_b32 v{V2+i}, 0" for i in range(4)])
    k("s_waitcnt vmcnt(3)")
    k(f"v_cndmask_b32 v{Q2}, 0, v{Q2}, {s(sHI,2)}", f"v_cndmask_b32 v{Q2+1}, 0, v{Q2+1}, {s(sHI,2)}")
    k("s_barrier")
    k(f"ds_read_b128 {v(KL,4)}, v{AK}", f"ds_read_b64 {v(KH,2)}, v{AH}", f"ds_read_b128 {v(V1,4)}, v{AV}")
    k("s_waitcnt lgkmcnt(1)")
    k(mfma32(S0, KL, Q1, True), mfma32(S0, KH, Q2, False))
    k(f"v_max3_f32 v{T0}, v{S0}, v{S0+1}, v{S0+2}")
    for i in range(3, 15, 2):
        k(f"v_max3_f32 v{T0}, v{T0}, v{S0+i}, v{S0+i+1}")
    k(f"v_max_f32 v{T0}, v{T0}, v{S0+15}", f"v_mov_b32 v{T0+1}, v{T0}",
      f"v_permlane32_swap_b32 v{T0}, v{T0+1}", f"v_max_f32 v{T0}, v{T0}, v{T0+1}",
      f"v_cvt_pk_bf16_f32 v{T0}, -v{T0}, 0", f"v_cndmask_b32 v{Q2+2}, 0, v{T0}, {s(sHI,2)}")
    k(mfma32(S0, KL, Q1, True), mfma32(S0, KH, Q2, False))
    k(f"ds_read_b128 {v(KL,4)}, v{AK} offset:{TILEB}", f"ds_read_b64 {v(KH,2)}, v{AH} offset:{TILEB}")
    k([f"v_mov_b32 v{S1+i}, 0" for i in range(12, 16)])
    k(f"s_mov_b32 s{sCNT}, 0", f"s_mov_b32 s{sSLOT}, {2*SLOT}")
    k("s_setprio 1")
    k("s_waitcnt lgkmcnt(0)")
    k(".p2align 6")
    k.label("La_loop")
    for j in range(8):
        Sc, Sn = (S0, S1) if j % 2 == 0 else (S1, S0)
        ex = lambda g: [f"v_exp_f32 v{Sc+4*g+c}, v{Sc+4*g+c}" for c in range(4)]
        cv = lambda Sx, g: [f"v_cvt_pk_bf16_f32 v{P+2*g+c}, v{Sx+4*g+2*c}, v{Sx+4*g+2*c+1}" for c in range(2)]
        ka = (lambda cur, nxt, t: (cur, t) if t < 8 else (nxt, t - 8))
        if j == 6:
            k("s_waitcnt vmcnt(0)", "s_barrier")
            k(f"s_cmp_ge_u32 s{sCNT}, 6", "s_cbranch_scc1 La_nodma")
            k(f"s_add_u32 m0, s{sM0}, s{sSLOT}", f"s_add_u32 s{sSO}, s{sSO}, {SLOT}", dma())
            k.label("La_nodma")
        r, t = ka(AK, BK, j + 2)
        k(cv(Sn, 3), "s_waitcnt lgkmcnt(2)", mfma32(Sn, KL, Q1, True),
          f"ds_read_b128 {v(KL,4)}, v{r} offset:{t*TILEB}", ex(0))
        k(cv(Sc, 0), mfma32(O, V2, P + 4, False),
          f"ds_read_b128 {v(V2,4)}, v{AV} offset:{j*TILEB+672}", ex(1))
        r, t = ka(AH, BH, j + 2)
        k(cv(Sc, 1), "s_waitcnt lgkmcnt(2)", mfma32(Sn, KH, Q2, False),
          f"ds_read_b64 {v(KH,2)}, v{r} offset:{t*TILEB}", ex(2))
        r, t = ka(AV, BV, j + 1)
        k(cv(Sc, 2), mfma32(O, V1, P, False),
          f"ds_read_b128 {v(V1,4)}, v{r} offset:{t*TILEB}", ex(3))
    k(f"s_add_u32 s{sCNT}, s{sCNT}, 1",
      f"s_cmp_eq_u32 s{sSLOT}, 0", csel(sDEL, (-2*SLOT) & 0xffffffff, SLOT),
      f"v_mov_b32 v{AK}, v{BK}", f"v_mov_b32 v{AH}, v{BH}", f"v_mov_b32 v{AV}, v{BV}",
      f"v_add_u32 v{BK}, s{sDEL}, v{BK}", f"v_add_u32 v{BH}, s{sDEL}, v{BH}", f"v_add_u32 v{BV}, s{sDEL}, v{BV}",
      f"s_add_u32 s{sSLOT}, s{sSLOT}, {SLOT}", f"s_cmp_eq_u32 s{sSLOT}, {3*SLOT}", f"s_cselect_b32 s{sSLOT}, 0, s{sSLOT}",
      f"s_cmp_lt_u32 s{sCNT}, 8", "s_cbranch_scc1 La_loop")
    k([f"v_cvt_pk_bf16_f32 v{P+6+c}, v{S1+12+2*c}, v{S1+12+2*c+1}" for c in range(2)])
    k("s_waitcnt lgkmcnt(0)", mfma32(O, V2, P + 4, False))
    k("s_setprio 0")
    k(f"s_lshr_b32 s{sT}, s{sHEAD}, 3", f"s_mul_i32 s{sT}, s{sT}, 5", f"s_add_u32 s{sT}, s{sT}, 54",
      f"s_bfe_u32 s{sT2}, s{sHEAD}, 0x20001", f"s_add_u32 s56, s{sT}, s{sT2}", f"s_lshl_b32 s56, s56, 10",
      f"s_and_b32 s57, s{sHEAD}, 1", f"s_lshl_b32 s58, s57, 9", f"s_add_u32 s56, s56, s58",
      f"s_add_u32 s59, s{sT}, 4", f"s_lshl_b32 s59, s59, 10", f"s_lshl_b32 s58, s{sT2}, 8", f"s_add_u32 s59, s59, s58",
      f"s_lshl_b32 s58, s57, 3", f"s_add_u32 s59, s59, s58",
      f"s_mul_i32 s58, s{sQT}, {2*HO_ROW}", f"s_add_u32 s56, s56, s58", f"s_add_u32 s59, s59, s58")
    k(f"v_lshrrev_b32 v{T0+4}, 4, v{vR}", f"v_mul_u32_u24 v{T0+4}, {HO_ROW}, v{T0+4}", f"v_and_b32 v{T0+5}, 15, v{vR}",
      f"v_lshl_add_u32 v{T0+4}, v{T0+5}, 4, v{T0+4}", f"v_lshl_add_u32 v{T0+5}, v{vHI}, 8, v{T0+4}")
    k.label("La_fin")
    k(f"v_mov_b32 v{T0}, v{O+8}", f"v_mov_b32 v{T0+1}, v{O+8}", f"v_permlane32_swap_b32 v{T0}, v{T0+1}")
    k("CHECK")
    k(f"v_rcp_f32 v{T0+2}, v{T0+1}", f"v_mul_f32 v{T0+2}, v{T0+2}, v{vG}")
    k([f"v_mul_f32 v{O+i}, v{O+i}, v{T0+2}" for i in range(12)])
    k([f"v_cvt_pk_bf16_f32 v{P+i}, v{O+2*i}, v{O+2*i+1}" for i in range(6)])
    k(f"buffer_store_dwordx4 {v(P,4)}, v{T0+5}, {s(RO,4)}, s56 offen")
    k(f"s_mov_b64 exec, {s(sHI,2)}")
    k(f"buffer_store_dwordx2 {v(P+4,2)}, v{T0+4}, {s(RO,4)}, s59 offen")
    k("s_endpgm")
    chk = K()
    sF = 60
    chk(f"s_cmp_lg_u32 s{sCNT}, 8", "s_cbranch_scc1 La_ok")
    chk(f"v_add_f32 v{T0+2}, abs(v{O+8}), abs(v{O+9})", f"v_add_f32 v{T0+3}, abs(v{O+10}), abs(v{O+11})",
        f"v_add_f32 v{T0+2}, v{T0+2}, v{T0+3}", f"v_cndmask_b32 v{T0+2}, 0, v{T0+2}, {s(sHI,2)}")
    for i in range(8):
        chk(f"v_add_f32 v{T0+2}, v{T0+2}, abs(v{O+i})")
    chk(f"v_mov_b32 v{T0+3}, {f32(2.0**100)}", f"v_mov_b32 v{T0+6}, {f32(2.0**-30)}", f"v_mov_b32 v{T0+7}, {f32(2.0**126)}",
        f"v_cmp_nlt_f32 {s(sF,2)}, v{T0+1}, v{T0+3}", f"v_cmp_ngt_f32 {s(sF+2,2)}, v{T0+1}, v{T0+6}", f"v_cmp_nlt_f32 vcc, v{T0+2}, v{T0+7}",
        f"s_or_b64 {s(sF,2)}, {s(sF,2)}, {s(sF+2,2)}", f"s_or_b64 {s(sF,2)}, {s(sF,2)}, vcc", "s_cbranch_scc1 La_slow")
    chk.label("La_ok")
    i = k.l.index("    CHECK")
    k.l[i:i+1] = chk.l
    k.label("La_slow")
    M, MN, AL = T0 + 8, T0 + 9, T0 + 10
    k(f"s_mov_b32 s{sCNT}, 9", f"s_mov_b32 s{sSO}, 0")
    k(f"v_mov_b32 v{Q2+2}, 0", f"v_mov_b32 v{M}, 0xff7fffff")
    k([f"v_mov_b32 v{O+i}, 0" for i in range(16)])
    k(f"v_lshlrev_b32 v{AH}, 3, v{vR}", f"v_mul_u32_u24 v{AV}, 336, v{vHI}", f"v_min_u32 v{AK}, 20, v{vR}", f"v_lshl_add_u32 v{AV}, v{AK}, 4, v{AV}")
    k.label("La_sloop")
    k(f"buffer_load_dwordx4 {v(KL,4)}, v{vDA}, {s(RKV,4)}, s{sSO} offen",
      f"buffer_load_dwordx2 {v(KH,2)}, v{AH}, {s(RKV,4)}, s{sSO} offen offset:1024",
      f"buffer_load_dwordx4 {v(V1,4)}, v{AV}, {s(RKV,4)}, s{sSO} offen offset:1280",
      f"buffer_load_dwordx4 {v(V2,4)}, v{AV}, {s(RKV,4)}, s{sSO} offen offset:{1280+672}",
      "s_waitcnt vmcnt(0)")
    k(mfma32(S0, KL, Q1, True), mfma32(S0, KH, Q2, False))
    k(f"v_max3_f32 v{MN}, v{S0}, v{S0+1}, v{M}")
    for i in range(2, 16, 2):
        k(f"v_max3_f32 v{MN}, v{MN}, v{S0+i}, v{S0+i+1}")
    k(f"v_mov_b32 v{AL}, v{MN}", f"v_permlane32_swap_b32 v{MN}, v{AL}", f"v_max_f32 v{MN}, v{MN}, v{AL}",
      f"v_sub_f32 v{AL}, v{M}, v{MN}", f"v_exp_f32 v{AL}, v{AL}", f"v_mov_b32 v{M}, v{MN}")
    for i in range(16):
        k(f"v_sub_f32 v{S0+i}, v{S0+i}, v{MN}", f"v_exp_f32 v{S0+i}, v{S0+i}", f"v_mul_f32 v{O+i}, v{O+i}, v{AL}")
    k([f"v_cvt_pk_bf16_f32 v{P+i}, v{S0+2*i}, v{S0+2*i+1}" for i in range(8)])
    k(mfma32(O, V1, P, False), mfma32(O, V2, P + 4, False))
    k(f"s_add_u32 s{sSO}, s{sSO}, {TILEB}", f"s_cmp_lt_u32 s{sSO}, {HEADB}", "s_cbranch_scc1 La_sloop")
    k("s_branch La_fin")

def gen_gu(k):
    sW = 26
    RX, RW, RG, RO = 28, 32, 36, 40
    sRB, sCB, sT, sT2, sM0X, sM0W, sKX, sKW, sWM, sWN = 44, 45, 46, 47, 48, 49, 50, 51, 52, 53
    vL = 2
    XF, WF = 16, 32
    XA, WA, DX, DW, VG = 48, 50, 51, 53, 54
    ACC = 64
    k(f"s_sub_u32 s{sT2}, s2, 256", f"s_and_b32 s{sT}, s{sT2}, 7", f"s_lshr_b32 s{sT2}, s{sT2}, 3",
      f"s_lshr_b32 s{sCB}, s{sT}, 1", f"s_mul_i32 s{sCB}, s{sCB}, 27", f"s_add_u32 s{sCB}, s{sCB}, s{sT2}",
      f"s_and_b32 s{sRB}, s{sT}, 1", f"s_lshl_b32 s{sRB}, s{sRB}, 2", f"s_and_b32 s{sT2}, s{sCB}, 3",
      f"s_add_u32 s{sRB}, s{sRB}, s{sT2}", f"s_lshr_b32 s{sCB}, s{sCB}, 2")
    k(f"v_lshrrev_b32 v3, 2, v{vL}", f"v_bfe_u32 v4, v{vL}, 4, 2", f"v_and_b32 v5, 3, v{vL}", f"v_xor_b32 v4, v4, v5",
      f"s_lshl_b32 s{sT}, s{sRB}, 8", f"s_lshl_b32 s{sT2}, s{sW}, 5", f"s_add_u32 s{sT}, s{sT}, s{sT2}",
      f"v_add_u32 v3, s{sT}, v3", f"v_mul_u32_u24 v3, 1280, v3", f"v_lshl_add_u32 v{DX}, v4, 4, v3",
      f"v_add_u32 v{DX+1}, {16*1280-1024}, v{DX}")
    k(f"v_lshrrev_b32 v3, 3, v{vL}", f"v_bfe_u32 v4, v{vL}, 4, 1", f"v_lshlrev_b32 v4, 2, v4", f"v_and_b32 v5, 7, v{vL}", f"v_xor_b32 v4, v4, v5",
      f"s_and_b32 s{sT}, s{sW}, 3", f"s_lshl_b32 s{sT}, s{sT}, 3", f"v_add_u32 v3, s{sT}, v3", f"v_mul_u32_u24 v3, {F*2}, v3",
      f"v_lshlrev_b32 v4, 4, v4", f"s_lshl_b32 s{sT2}, s{sCB}, 7", f"v_add3_u32 v{DW}, v3, v4, s{sT2}")
    k(f"s_lshl_b32 s{sM0X}, s{sW}, 11", f"s_lshl_b32 s{sM0W}, s{sW}, 10", f"s_add_u32 s{sM0W}, s{sM0W}, 49152")
    k("s_waitcnt lgkmcnt(0)")
    srd(k, RX, sX, S * D * 2)
    k(f"s_cmp_ge_u32 s{sW}, 4", f"s_cselect_b32 s{RW}, s{sWU}, s{sWG}", f"s_cselect_b32 s{RW+1}, s{sWU+1}, s{sWG+1}",
      f"s_mov_b32 s{RW+2}, {D*F*2}", f"s_mov_b32 s{RW+3}, 0x00020000")
    def dma(st):
        slot = st % 3
        return [f"s_add_u32 m0, s{sM0X}, {slot*16384}", f"s_mov_b32 s{sKX}, {st*64}",
                f"buffer_load_dwordx4 v{DX}, {s(RX,4)}, s{sKX} offen lds",
                f"buffer_load_dwordx4 v{DX+1}, {s(RX,4)}, s{sKX} offen offset:1024 lds",
                f"s_add_u32 m0, s{sM0W}, {slot*8192}", f"s_mov_b32 s{sKW}, {st*32*F*2}",
                f"buffer_load_dwordx4 v{DW}, {s(RW,4)}, s{sKW} offen lds"]
    for st in range(3): k(dma(st))
    srd(k, RG, sWS, S * 4, G_OFF)
    srd(k, RO, sWS, HO_SIZE, HO_OFF)
    k(f"s_lshr_b32 s{sWM}, s{sW}, 1", f"s_and_b32 s{sWN}, s{sW}, 1")
    k(f"v_and_b32 v3, 31, v{vL}", f"v_lshrrev_b32 v4, 5, v{vL}",
      f"s_lshl_b32 s{sT}, s{sWM}, 6", f"v_add_u32 v5, s{sT}, v3", f"v_bfe_u32 v6, v5, 2, 2", f"v_lshlrev_b32 v8, 6, v5")
    for st_ in range(2):
        k(f"v_or_b32 v7, {2*st_}, v4", f"v_xor_b32 v7, v7, v6", f"v_lshl_add_u32 v{XA+st_}, v7, 4, v8")
    k(f"s_lshl_b32 s{sT}, s{sRB}, 10", f"v_lshlrev_b32 v5, 2, v5",
      f"buffer_load_dword v{VG}, v5, {s(RG,4)}, s{sT} offen", f"buffer_load_dword v{VG+1}, v5, {s(RG,4)}, s{sT} offen offset:128")
    k(f"v_bfe_u32 v5, v{vL}, 2, 2", f"v_lshl_add_u32 v6, v4, 3, v5", f"v_lshlrev_b32 v6, 7, v6",
      f"v_bfe_u32 v7, v{vL}, 4, 1", f"v_lshl_add_u32 v6, v7, 5, v6", f"v_and_b32 v7, 3, v{vL}", f"v_lshl_add_u32 v6, v7, 3, v6",
      f"v_lshrrev_b32 v5, 1, v5", f"v_xor_b32 v5, s{sWN}, v5", f"v_lshl_add_u32 v6, v5, 6, v6", f"v_add_u32 v{WA}, 49152, v6")
    def reads(st, step, buf):
        slot = st % 3
        o = []
        for t in range(2):
            o.append(f"ds_read_b128 {v(XF+buf*8+t*4,4)}, v{XA+step} offset:{slot*16384+t*2048}")
            for half in range(2):
                o.append(f"ds_read_b64_tr_b16 {v(WF+buf*8+t*4+half*2,2)}, v{WA} offset:{slot*8192+t*4096+(16*step+4*half)*128}")
        return o
    def mfmas(buf, first):
        return [mfma32(ACC+(mt*2+nt)*16, WF+buf*8+nt*4, XF+buf*8+mt*4, first) for mt, nt in [(0,0),(1,0),(1,1),(0,1)]]
    nodma = lambda st: [] if st < 3 else dma(st)
    gemm_loop(k, 20, 2, 3, 3, nodma, reads, mfmas)
    k(f"s_lshl_b32 s{sT}, s{sRB}, 4", f"s_lshl_b32 s{sT2}, s{sWM}, 2", f"s_add_u32 s{sT}, s{sT}, s{sT2}", f"s_mul_i32 s{sT}, s{sT}, {HO_ROW}",
      f"s_lshl_b32 s{sT2}, s{sCB}, 1", f"s_add_u32 s{sT2}, s{sT2}, s{sWN}", f"s_lshl_b32 s{sT2}, s{sT2}, 10", f"s_add_u32 s54, s{sT}, s{sT2}",
      f"s_add_u32 s55, s54, {2*HO_ROW}")
    k(f"v_lshrrev_b32 v5, 4, v3", f"v_mul_u32_u24 v5, {HO_ROW}, v5", f"v_and_b32 v6, 15, v3", f"v_lshl_add_u32 v5, v6, 4, v5",
      f"v_lshl_add_u32 v5, v4, 8, v5")
    k(f"v_sub_f32 v{VG}, 1.0, v{VG}", f"v_sub_f32 v{VG+1}, 1.0, v{VG+1}")
    for mt in range(2):
        g_, u_ = ACC + mt*32, ACC + mt*32 + 16
        for t in range(2):
            tt = 16 + (mt*2+t)*4
            for c in range(8):
                r = 8*t + c
                k(f"v_mul_f32 v{g_+r}, v{g_+r}, v{VG+mt}")
            for c in range(8):
                r = 8*t + c
                k(f"v_mul_f32 v{g_+r}, v{g_+r}, v{u_+r}")
            k([f"v_cvt_pk_bf16_f32 v{tt+c}, v{g_+8*t+2*c}, v{g_+8*t+2*c+1}" for c in range(4)])
            k(f"buffer_store_dwordx4 {v(tt,4)}, v5, {s(RO,4)}, s{54+mt} offen offset:{512*t}")
    k("s_endpgm")

def gen_mid(with_gu=True):
    k = K()
    load_args(k)
    wave_ids(k, 26, 2)
    k("s_cmp_ge_u32 s2, 256", "s_cbranch_scc1 Lm_g")
    gen_attn(k)
    k.label("Lm_g")
    k("s_cmp_ge_u32 s2, 472", "s_cbranch_scc1 Lm_end")
    gen_gu(k)
    k.label("Lm_end")
    k("s_endpgm")
    return k.l, dict(grid=472, block=512, lds=81920, vgpr=128)

def gen_fin():
    k = K()
    sW = 26
    RA, RD, RWO, RO = 28, 32, 36, 40
    sRB, sCB, sT, sT2, sM0, sKA, sWA, sWB, sKH, sRG = 44, 45, 46, 47, 48, 49, 50, 51, 52, 53
    sEX = 54
    vL, DW, DA, WA = 2, 8, 9, 10
    NS = 6
    AF, WF, ACC = 16, 48, 96
    load_args(k)
    wave_ids(k, sW, vL)
    k("s_cmp_ge_u32 s2, 256", "s_cbranch_scc1 Lf_end")
    k(f"s_and_b32 s{sT}, s2, 7", f"s_lshr_b32 s{sT2}, s2, 3",
      f"s_and_b32 s{sRB}, s{sT}, 3", f"s_lshl_b32 s{sRB}, s{sRB}, 3", f"s_and_b32 s56, s{sT2}, 7", f"s_add_u32 s{sRB}, s{sRB}, s56",
      f"s_lshr_b32 s{sCB}, s{sT}, 2", f"s_lshl_b32 s{sCB}, s{sCB}, 2", f"s_lshr_b32 s56, s{sT2}, 3", f"s_add_u32 s{sCB}, s{sCB}, s56")
    k(f"s_lshr_b32 s{sKH}, s{sW}, 2", f"s_and_b32 s{sRG}, s{sW}, 3")
    k(f"v_mul_u32_u24 v3, 6554, v{vL}", f"v_lshrrev_b32 v3, 16, v3", f"v_mul_u32_u24 v4, 10, v3", f"v_sub_u32 v4, v{vL}, v4",
      f"v_mul_u32_u24 v3, 1280, v3", f"v_lshlrev_b32 v4, 4, v4", f"s_mul_i32 s{sT}, s{sCB}, 160", f"v_add3_u32 v{DW}, v3, v4, s{sT}")
    k(f"v_lshlrev_b32 v{DA}, 4, v{vL}")
    k(f"s_mul_i32 s{sM0}, s{sW}, 1280")
    k(f"s_mov_b32 s{sEX}, -1", f"s_mov_b32 s{sEX+1}, 0xff")
    k(f"s_lshl_b32 s{sT}, s{sRB}, 2", f"s_add_u32 s{sT}, s{sT}, s{sRG}", f"s_mul_i32 s{sT}, s{sT}, {HO_ROW}",
      f"s_lshl_b32 s{sT2}, s{sKH}, 10", f"s_add_u32 s{sKA}, s{sT}, s{sT2}")
    k(f"s_mul_i32 s56, s{sW}, {8*1280}")
    k(f"s_lshr_b32 s57, s{sRG}, 1", f"s_mul_i32 s57, s57, 20", f"s_and_b32 s58, s{sRG}, 1", f"s_lshl_b32 s58, s58, 3", f"s_add_u32 s57, s57, s58",
      f"s_mul_i32 s57, s57, 1280")
    k(f"s_lshr_b32 s58, s{sRG}, 1", f"s_lshl_b32 s58, s58, 2", f"s_and_b32 s59, s{sRG}, 1", f"s_add_u32 s58, s58, s59",
      f"s_mul_i32 s58, s58, {20*1280}", f"s_add_u32 s58, s58, {16*1280}")
    k("s_waitcnt lgkmcnt(0)")
    srd(k, RA, sWS, HO_SIZE, HO_OFF)
    srd(k, RD, sWD, F * D * 2)
    srd(k, RWO, sWO, D * D * 2)
    srd(k, RO, sOUT, S * D * 2)
    NST = 37
    def dma(st):
        slot = st % NS
        o = [f"s_add_u32 m0, s{sM0}, {slot*10240}"]
        if st < 27:
            o += [f"s_add_u32 s{sWA}, s56, {st*64*1280}", f"s_add_u32 s{sWB}, s56, {st*64*1280 + 4*1280 - 640}"]
            R = RD
        else:
            alts = []
            for kh in range(2):
                q = 2 * (st - 27) + kh
                u, m = divmod(q, 5)
                alts.append((57, (160*u + 40*m) * 1280, 4*1280) if m < 4 else (58, 160*u*1280, 40*1280))
            (r0, c0, d0), (r1, c1, d1) = alts
            o += [f"s_cmp_eq_u32 s{sKH}, 0",
                  f"s_cselect_b32 s{sWA}, s{r0}, s{r1}", *csel(sT, c0, c1), *csel(sT2, d0-640, d1-640),
                  f"s_add_u32 s{sWA}, s{sWA}, s{sT}", f"s_add_u32 s{sWB}, s{sWA}, s{sT2}"]
            R = RWO
        o += [[f"s_mov_b64 exec, {s(sEX,2)}",
               f"buffer_load_dwordx4 v{DW}, {s(R,4)}, s{sWA} offen lds",
               f"buffer_load_dwordx4 v{DW}, {s(R,4)}, s{sWB} offen offset:640 lds",
               "s_mov_b64 exec, -1"],
              f"s_add_u32 s{sT}, s{sKA}, {st*2048}",
              f"buffer_load_dwordx4 {v(AF+slot*4,4)}, v{DA}, {s(RA,4)}, s{sT} offen"]
        return o
    for st in range(NS - 1): k(dma(st))
    k(f"v_lshrrev_b32 v3, 5, v{vL}", f"v_lshlrev_b32 v3, 4, v3", f"v_bfe_u32 v4, v{vL}, 4, 1", f"v_lshl_add_u32 v3, v4, 2, v3",
      f"v_bfe_u32 v4, v{vL}, 2, 2", f"s_lshl_b32 s{sT}, s{sKH}, 5", f"v_add3_u32 v3, v3, v4, s{sT}", f"v_mul_u32_u24 v3, 160, v3",
      f"v_and_b32 v4, 3, v{vL}", f"v_lshl_add_u32 v{WA}, v4, 3, v3")
    def reads(st, buf):
        slot = st % NS
        return [f"ds_read_b64_tr_b16 {v(WF+buf*20+nt*4+half*2,2)}, v{WA} offset:{slot*10240+half*8*160+nt*32}" for nt in range(5) for half in range(2)]
    k(f"s_waitcnt vmcnt({(NS-2)*3})", "s_barrier", reads(0, 0))
    for st in range(NST):
        buf = st & 1
        mf = [mfma16(ACC+nt*4, WF+buf*20+nt*4, AF+(st % NS)*4, st == 0) for nt in range(5)]
        if st + 1 < NST:
            allowed = (min(st + NS - 2, NST - 1) - (st + 1)) * 3
            k(f"s_waitcnt vmcnt({allowed}) lgkmcnt(0)", "s_barrier")
            fill = reads(st + 1, buf ^ 1) + (dma(st + NS - 1) if st + NS - 1 < NST else [])
            k(spread(mf, fill))
        else:
            k("s_waitcnt lgkmcnt(0)", mf)
    k("s_barrier")
    k(f"v_and_b32 v3, 15, v{vL}", f"s_lshl_b32 s{sT}, s{sRG}, 4", f"v_add_u32 v3, s{sT}, v3", f"v_mul_u32_u24 v3, 336, v3",
      f"v_lshrrev_b32 v4, 4, v{vL}", f"v_lshl_add_u32 v3, v4, 4, v3", f"s_mul_i32 s{sT}, s{sKH}, {64*336}", f"v_add_u32 v3, s{sT}, v3")
    k([f"ds_write_b128 v3, {v(ACC+nt*4,4)} offset:{nt*64}" for nt in range(5)])
    k(f"v_mul_u32_u24 v4, 6554, v0", f"v_lshrrev_b32 v4, 16, v4", f"v_mul_u32_u24 v5, 10, v4", f"v_sub_u32 v5, v0, v5",
      f"v_add_u32 v6, 512, v0", f"v_mul_u32_u24 v7, 6554, v6", f"v_lshrrev_b32 v7, 16, v7", f"v_mul_u32_u24 v11, 10, v7", f"v_sub_u32 v6, v6, v11")
    k(f"v_mul_u32_u24 v12, 336, v4", f"v_lshl_add_u32 v12, v5, 5, v12", f"v_mul_u32_u24 v13, 336, v7", f"v_lshl_add_u32 v13, v6, 5, v13",
      f"v_mul_u32_u24 v14, 1280, v4", f"v_lshl_add_u32 v14, v5, 4, v14", f"v_mul_u32_u24 v15, 1280, v7", f"v_lshl_add_u32 v15, v6, 4, v15",
      f"s_mul_i32 s{sT}, s{sRB}, {64*1280}", f"s_mul_i32 s{sT2}, s{sCB}, 160", f"s_add_u32 s{sT}, s{sT}, s{sT2}")
    k("s_waitcnt lgkmcnt(0)", "s_barrier")
    for rnd, (la, ga) in enumerate(((12, 14), (13, 15))):
        if rnd == 1:
            k(f"s_cmp_ge_u32 s{sW}, 2", "s_cbranch_scc1 Lf_end")
        k(f"ds_read_b128 v[16:19], v{la}", f"ds_read_b128 v[20:23], v{la} offset:16",
          f"ds_read_b128 v[24:27], v{la} offset:{64*336}", f"ds_read_b128 v[28:31], v{la} offset:{64*336+16}", "s_waitcnt lgkmcnt(0)")
        k([f"v_add_f32 v{16+c}, v{16+c}, v{24+c}" for c in range(8)])
        k([f"v_cvt_pk_bf16_f32 v{32+rnd*4+c}, v{16+2*c}, v{17+2*c}" for c in range(4)])
        k(f"buffer_store_dwordx4 {v(32+rnd*4,4)}, v{ga}, {s(RO,4)}, s{sT} offen")
    k.label("Lf_end")
    k("s_endpgm")
    return k.l, dict(grid=256, block=512, lds=61440, vgpr=128)

HEAD = open("cdna_kernels/" + NAME + ".s.ref").read().split("; Override launch")[0]
def emit(kernels, verbose=False):
    out = [HEAD.rstrip()]
    for name, (lines, cfg) in kernels:
        out.append(f"; @launch kernel={name} grid=({cfg['grid']},1,1) block=({cfg['block']},1,1) lds={cfg['lds']}")
    out += ['.amdgcn_target "amdgcn-amd-amdhsa--gfx950"', ".text"]
    for name, (lines, cfg) in kernels:
        fixed, n = fix_hazards(lines, verbose)
        out += [f".globl {name}", ".p2align 8", f".type {name},@function", f"{name}:"] + fixed
    out += ['.section .rodata,"a"']
    for name, (lines, cfg) in kernels:
        out += [".p2align 6", f".amdhsa_kernel {name}", f"  .amdhsa_next_free_vgpr {cfg['vgpr']}", "  .amdhsa_next_free_sgpr 96",
                f"  .amdhsa_accum_offset {cfg['vgpr']}", "  .amdhsa_group_segment_fixed_size 0", "  .amdhsa_kernarg_size 88",
                "  .amdhsa_user_sgpr_count 2", "  .amdhsa_user_sgpr_kernarg_segment_ptr 1", "  .amdhsa_system_sgpr_workgroup_id_x 1",
                ".end_amdhsa_kernel"]
    return "\n".join(out) + "\n"

if __name__ == "__main__":
    outp = sys.argv[1] if len(sys.argv) > 1 else "cdna_kernels/" + NAME + ".s"
    txt = emit([("qkv_kernel", gen_qkv(4)), ("mid_kernel", gen_mid()), ("fin_kernel", gen_fin())], verbose="-v" in sys.argv)
    open(outp, "w").write(txt)
    print("wrote", outp, len(txt), "bytes")
```

```python
import sys, math, struct
sys.path.insert(0, "dev")
from asmlib import *

NAME = "gated_mix__mha_block__glu_gated_bilinear__prompt"
S, D, H, DH, F = 2048, 640, 32, 20, 1728
OPT = {}
PT = 5120
PAIRB = 64 * PT
KV_OFF = 0
QT = 2560
QPAIR = 64 * QT
Q_OFF = 0x600000
G_OFF = 0x900000
FL_OFF = 0x910000
HO_OFF = 0xA00000
HO_ROW = 74 * 1024
HO_SIZE = 128 * HO_ROW
WT_OFF = 0x1400000
WT_CB = 2368 * 160
WT_SIZE = 8 * WT_CB
TB = 2816
SLOT = 8 * TB
QSCALE = math.log2(math.e) / math.sqrt(DH)
SC = " sc1"

def f32(x): return "0x%08x" % struct.unpack("<I", struct.pack("<f", x))[0]

sX, sWQKV, sWO, sWG, sWU, sWD, sGW, sOUT, sDBG, sWS = 4, 6, 8, 12, 14, 16, 18, 20, 22, 24
sW = 26
vL = 2

def load_args(k):
    k("s_load_dwordx16 s[4:19], s[0:1], 0", "s_load_dwordx4 s[20:23], s[0:1], 64", "s_load_dwordx2 s[24:25], s[0:1], 80")
    k(f"v_lshrrev_b32 v1, 6, v0", f"v_and_b32 v{vL}, 63, v0", f"v_readfirstlane_b32 s{sW}, v1")

def srd(k, d, ptr, size, off=0, soff=None):
    if soff is not None:
        k(f"s_add_u32 s{d}, s{ptr}, s{soff}", f"s_addc_u32 s{d+1}, s{ptr+1}, 0")
        if off: k(f"s_add_u32 s{d}, s{d}, {off}", f"s_addc_u32 s{d+1}, s{d+1}, 0")
    elif off:
        k(f"s_add_u32 s{d}, s{ptr}, {off}", f"s_addc_u32 s{d+1}, s{ptr+1}, 0")
    else:
        k(f"s_mov_b32 s{d}, s{ptr}", f"s_mov_b32 s{d+1}, s{ptr+1}")
    k(f"s_mov_b32 s{d+2}, {size}", f"s_mov_b32 s{d+3}, 0x00020000")

def csel(d, a_, b_): return [f"s_mov_b32 s{d}, {b_}", f"s_cmov_b32 s{d}, {a_}"]

def spread(mf, fill, pre=0):
    out = list(fill[:pre]); fill = fill[pre:]
    n = len(mf)
    per = -(-len(fill) // n) if fill else 0
    fi = 0
    for j, m in enumerate(mf):
        out.append(m)
        take = per if j < n - 1 else len(fill) - fi
        out += fill[fi:fi + take]; fi += take
    return out

class VM:
    def __init__(self): self.q = []
    def add(self, tag, n=1): self.q += [tag] * n
    def wait(self, *tags):
        last = max((i for i, t in enumerate(self.q) if t in tags), default=-1)
        n = len(self.q) - 1 - last
        self.q = self.q[last + 1:]
        assert n <= 63
        return n

def mfma32(d, a_, b_, first=False):
    return f"v_mfma_f32_32x32x16_bf16 {v(d,16)}, {v(a_,4)}, {v(b_,4)}, {'0' if first else v(d,16)}"
def mfma16(d, a_, b_, first=False):
    return f"v_mfma_f32_16x16x32_bf16 {v(d,4)}, {v(a_,4)}, {v(b_,4)}, {'0' if first else v(d,4)}"

def signal(k, R, off, label):
    k("s_waitcnt vmcnt(0)", "s_barrier", f"s_cmp_lg_u32 s{sW}, 0", f"s_cbranch_scc1 {label}",
      "s_mov_b64 exec, 1", "v_mov_b32 v1, 1", "v_mov_b32 v7, 0",
      f"buffer_atomic_add v1, v7, {s(R,4)}, s{off} offen sc1", "s_mov_b64 exec, -1")
    k.label(label)

def await_flag(k, R, off, want, label, sT):
    k(f"s_cmp_lg_u32 s{sW}, 0", f"s_cbranch_scc1 {label}_d", f"s_mov_b32 s{sT}, 0", "v_mov_b32 v7, 0")
    k.label(label)
    k(f"buffer_load_dword v1, v7, {s(R,4)}, s{off} offen sc1", "s_waitcnt vmcnt(0)", f"v_readfirstlane_b32 s{sT+1}, v1",
      f"s_add_u32 s{sT}, s{sT}, 1", f"s_cmp_ge_u32 s{sT+1}, {want}", f"s_cbranch_scc1 {label}_d",
      "s_sleep 2", f"s_cmp_lt_u32 s{sT}, 0x40000", f"s_cbranch_scc1 {label}")
    k.label(label + "_d")
    k("s_waitcnt vmcnt(0)", "s_barrier")

class XW:
    RX, RW = 28, 32
    sRB, sCB, sT, sT2, sM0X, sM0W, sKX, sKW, sWM, sWN = 44, 45, 46, 47, 48, 49, 50, 51, 52, 53
    XF, WF, XA, WA, DX, DW, ACC = 16, 32, 48, 52, 53, 55, 64
    def __init__(self, k, NR, NXS, NWS, wrow):
        self.k, self.NR, self.NXS, self.NWS, self.wrow = k, NR, NXS, NWS, wrow
        self.WB = NXS * 16384
        self.WS = NR * 8192
        self.vm = VM()
    def setup_dma(self):
        k, c = self.k, self
        sT, sT2 = c.sT, c.sT2
        k(f"v_lshrrev_b32 v3, 3, v{vL}", f"v_lshrrev_b32 v4, 4, v{vL}", f"v_and_b32 v5, 7, v{vL}", f"v_and_b32 v6, 15, v{vL}")
        k(f"s_lshl_b32 s{sT}, s{c.sRB}, 7", f"s_lshl_b32 s{sT2}, s{sW}, 4", f"s_add_u32 s{sT}, s{sT}, s{sT2}",
          f"v_add_u32 v3, s{sT}, v3", f"v_mul_u32_u24 v3, 1280, v3",
          f"v_xor_b32 v5, v5, v4", f"v_lshl_add_u32 v{c.DX}, v5, 4, v3",
          f"v_xor_b32 v5, 4, v5", f"v_lshl_add_u32 v{c.DX+1}, v5, 4, v3", f"v_add_u32 v{c.DX+1}, {8*1280-1024}, v{c.DX+1}")
        if c.NR == 1:
            k(f"s_lshl_b32 s{sT}, s{sW}, 2", f"s_lshl_b32 s{c.sM0W}, s{sW}, 10")
        else:
            k(f"s_and_b32 s{sT}, s{sW}, 3", f"s_lshl_b32 s{sT}, s{sT}, 3", f"s_lshl_b32 s{c.sM0W}, s{sW}, 11")
        k(f"v_lshlrev_b32 v7, 2, v4", f"v_xor_b32 v7, v7, v6", f"v_lshlrev_b32 v7, 4, v7",
          f"v_add_u32 v8, s{sT}, v4", f"v_mul_u32_u24 v8, {c.wrow}, v8", f"s_lshl_b32 s{sT2}, s{c.sCB}, 8", f"v_add3_u32 v{c.DW}, v7, v8, s{sT2}")
        if c.NR == 2: k(f"v_add_u32 v{c.DW+1}, {4*c.wrow-1024}, v{c.DW}")
        k(f"s_lshl_b32 s{c.sM0X}, s{sW}, 11", f"s_add_u32 s{c.sM0W}, s{c.sM0W}, {c.WB}")
    def dx(self, st, js=(0, 1)):
        c = self
        self.vm.add(("x", st), len(js))
        return [f"s_add_u32 m0, s{c.sM0X}, {(st % c.NXS)*16384}", f"s_movk_i32 s{c.sKX}, {st*128}"] + \
               [f"buffer_load_dwordx4 v{c.DX+j}, {s(c.RX,4)}, s{c.sKX} offen offset:{1024*j} lds" for j in js]
    def dw(self, h):
        c = self
        self.vm.add(("w", h), c.NR)
        return [f"s_add_u32 m0, s{c.sM0W}, {(h % c.NWS)*c.WS}", f"s_mov_b32 s{c.sKW}, {h*32*c.wrow}"] + \
               [f"buffer_load_dwordx4 v{c.DW+j}, {s(c.RW,4)}, s{c.sKW} offen offset:{1024*j} lds" for j in range(c.NR)]
    def prologue_dma(self):
        c, k = self, self.k
        order = [("x", 0), ("w", 0), ("w", 1), ("x", 1), ("w", 2), ("w", 3), ("x", 2)]
        for t, i in order:
            if t == "x" and i < c.NXS: k(c.dx(i))
            if t == "w" and i < c.NWS: k(c.dw(i))
    def setup_reads(self):
        k, c = self.k, self
        k(f"s_lshr_b32 s{c.sWM}, s{sW}, 2", f"s_and_b32 s{c.sWN}, s{sW}, 3")
        k(f"v_and_b32 v3, 31, v{vL}", f"v_lshrrev_b32 v4, 5, v{vL}",
          f"s_lshl_b32 s{c.sT}, s{c.sWM}, 6", f"v_add_u32 v5, s{c.sT}, v3", f"v_bfe_u32 v6, v5, 1, 3", f"v_lshlrev_b32 v5, 7, v5")
        for q in range(4):
            k(f"v_or_b32 v7, {2*q}, v4", f"v_xor_b32 v7, v7, v6", f"v_lshl_add_u32 v{c.XA+q}, v7, 4, v5")
        k(f"v_bfe_u32 v5, v{vL}, 2, 2", f"v_lshl_add_u32 v6, v4, 3, v5", f"v_lshlrev_b32 v6, 8, v6",
          f"v_bfe_u32 v7, v{vL}, 4, 1", f"v_lshl_add_u32 v6, v7, 5, v6", f"v_and_b32 v7, 3, v{vL}", f"v_lshl_add_u32 v6, v7, 3, v6",
          f"v_xor_b32 v7, s{c.sWN}, v5", f"v_lshl_add_u32 v6, v7, 6, v6", f"v_add_u32 v{c.WA}, {c.WB}, v6")
    def reads(self, h, step, buf):
        c = self
        o = []
        for t in range(2):
            o.append(f"ds_read_b128 {v(c.XF+buf*8+t*4,4)}, v{c.XA+2*(h&1)+step} offset:{((h>>1) % c.NXS)*16384+t*4096}")
            if t < c.NR:
                for half in range(2):
                    o.append(f"ds_read_b64_tr_b16 {v(c.WF+buf*8+t*4+half*2,2)}, v{c.WA} offset:{(h % c.NWS)*c.WS+t*8192+(16*step+4*half)*256}")
        return o
    def mf(self, buf, first, tok_is_n):
        c = self
        o = []
        for mt, nt in ([(0,0),(1,0),(1,1),(0,1)] if c.NR == 2 else [(0,0),(1,0)]):
            x_, w_ = c.XF+buf*8+mt*4, c.WF+buf*8+nt*4
            o.append(mfma32(c.ACC+(mt*c.NR+nt)*16, *((w_, x_) if tok_is_n else (x_, w_)), first))
        return o
    def loop(self, tok_is_n):
        c, k = self, self.k
        vm = c.vm
        k("STAMP0", f"s_waitcnt vmcnt({vm.wait(('x', 0), ('w', 0))})", "s_barrier", "STAMP1", c.reads(0, 0, 0))
        NH = 20
        for h in range(NH):
            k("s_waitcnt lgkmcnt(0)", spread(c.mf(0, h == 0, tok_is_n), c.reads(h, 1, 1)))
            if h + 1 < NH:
                k(f"s_waitcnt vmcnt({vm.wait(('x', (h+1) >> 1), ('w', h+1))}) lgkmcnt(0)", "s_barrier")
                d = []
                if h + c.NWS < NH: d += c.dw(h + c.NWS)
                if c.NXS == 2:
                    if h & 1 and (h >> 1) + 2 < 10: d += c.dx((h >> 1) + 2)
                else:
                    if h & 1 and (h >> 1) + c.NXS < 10: d += c.dx((h >> 1) + c.NXS, (0,))
                    if not h & 1 and h >= 2 and (h >> 1) - 1 + c.NXS < 10: d += c.dx((h >> 1) - 1 + c.NXS, (1,))
                r = c.reads(h + 1, 0, 0)
                k(spread(c.mf(1, False, tok_is_n), r + d))
            else:
                k("s_waitcnt lgkmcnt(0)", c.mf(1, False, tok_is_n))
            if h == 9: k("STAMP2")
        k("STAMP3")

def gen_qkv():
    k = K()
    c = XW(k, 1, 3, 4, 3840)
    RO = 36
    sT, sT2, sRB, sCB = c.sT, c.sT2, c.sRB, c.sCB
    load_args(k)
    k("s_cmp_ge_u32 s2, 240", "s_cbranch_scc1 Lq_misc")
    k(f"s_and_b32 s{sT}, s2, 7", f"s_lshr_b32 s{sT2}, s2, 3",
      f"s_lshr_b32 s{sCB}, s{sT}, 2", f"s_mul_i32 s{sCB}, s{sCB}, 30", f"s_add_u32 s{sCB}, s{sCB}, s{sT2}",
      f"s_and_b32 s{sRB}, s{sT}, 3", f"s_lshl_b32 s{sRB}, s{sRB}, 2", f"s_and_b32 s{sT2}, s{sCB}, 3",
      f"s_add_u32 s{sRB}, s{sRB}, s{sT2}", f"s_lshr_b32 s{sCB}, s{sCB}, 2")
    c.setup_dma()
    k("s_waitcnt lgkmcnt(0)")
    srd(k, c.RX, sX, S * D * 2)
    srd(k, c.RW, sWQKV, D * 3 * D * 2)
    c.prologue_dma()
    c.setup_reads()
    OA = 57
    k(f"s_lshl_b32 s55, s{sRB}, 2", f"s_lshl_b32 s56, s{c.sWM}, 1", f"s_add_u32 s55, s55, s56")
    k(f"s_cmp_ge_u32 s{sCB}, 10", "s_cbranch_scc1 Lq_v")
    k(f"s_cmp_ge_u32 s{sCB}, 5", csel(57, KV_OFF, Q_OFF), csel(58, PAIRB, QPAIR), csel(59, PT, QT), csel(60, "1.0", f32(QSCALE)),
      csel(61, 1280, 0), csel(62, 5, 0), f"s_sub_u32 s62, s{sCB}, s62")
    k(f"s_lshl_b32 s63, s58, 4")
    k(f"s_add_u32 s{RO}, s{sWS}, s57", f"s_addc_u32 s{RO+1}, s{sWS+1}, 0", f"s_mov_b32 s{RO+2}, s63", f"s_mov_b32 s{RO+3}, 0x00020000")
    k(f"s_mul_i32 s55, s55, s59", f"s_add_u32 s56, s55, s59")
    k(f"s_lshl_b32 s62, s62, 2", f"s_add_u32 s62, s62, s{c.sWN}", f"s_lshl_b32 s62, s62, 2", "s_mov_b32 s63, 52429")
    for ip in range(2):
        k(f"v_add3_u32 v5, s62, v4, {2*ip}", f"v_mul_u32_u24 v6, s63, v5", f"v_lshrrev_b32 v6, 18, v6",
          f"v_mul_u32_u24 v7, 5, v6", f"v_sub_u32 v5, v5, v7",
          f"v_sub_u32 v7, v5, 1", f"v_med3_i32 v7, v7, 0, 2", f"v_mul_u32_u24 v7, s61, v7",
          f"v_lshl_add_u32 v7, v5, 9, v7", f"v_lshl_add_u32 v7, v3, 4, v7", f"v_mul_lo_u32 v6, v6, s58", f"v_add_u32 v{OA+ip}, v6, v7")
    vm0 = list(c.vm.q)
    c.loop(True)
    for mt in range(2):
        base = c.ACC + mt*16
        k([f"v_mul_f32 v{base+r}, s60, v{base+r}" for r in range(16)])
        for ip in range(2):
            t = 16 + (mt*2+ip)*4
            k([f"v_cvt_pk_bf16_f32 v{t+q}, v{base+8*ip+2*q}, v{base+8*ip+2*q+1}" for q in range(4)])
        for ip in range(2):
            t = 16 + (mt*2+ip)*4
            k(f"v_permlane32_swap_b32 v{t}, v{t+2}", f"v_permlane32_swap_b32 v{t+1}, v{t+3}",
              f"buffer_store_dwordx4 {v(t,4)}, v{OA+ip}, {s(RO,4)}, s{55+mt} offen")
    k("s_endpgm")
    k.label("Lq_v")
    srd(k, RO, sWS, 16 * PAIRB, KV_OFF)
    k(f"s_mul_i32 s55, s55, {PT}", f"s_add_u32 s56, s55, {PT}",
      f"s_sub_u32 s62, s{sCB}, 10", f"s_lshl_b32 s62, s62, 2", f"s_add_u32 s62, s62, s{c.sWN}", f"s_lshl_b32 s62, s62, 5",
      f"s_mov_b32 s63, 3277", f"s_mov_b32 s58, {PAIRB}")
    k(f"v_add_u32 v5, s62, v3", f"v_mul_u32_u24 v6, s63, v5", f"v_lshrrev_b32 v6, 16, v6",
      f"v_mul_u32_u24 v7, 20, v6", f"v_sub_u32 v5, v5, v7", f"v_lshlrev_b32 v5, 4, v5",
      f"v_and_b32 v7, 1, v6", f"v_mul_u32_u24 v7, 1792, v7", f"v_lshrrev_b32 v6, 1, v6", f"v_mul_lo_u32 v6, v6, s58",
      f"v_add3_u32 v5, v5, v6, v7", f"v_mul_u32_u24 v7, 320, v4", f"v_add_u32 v{OA}, v5, v7")
    c.vm.q = vm0
    c.loop(False)
    for mt in range(2):
        base = c.ACC + mt*16
        for t in range(2):
            tt = 16 + (mt*2+t)*4
            k([f"v_cvt_pk_bf16_f32 v{tt+q}, v{base+8*t+2*q}, v{base+8*t+2*q+1}" for q in range(4)])
            k(f"buffer_store_dwordx4 {v(tt,4)}, v{OA}, {s(RO,4)}, s{55+mt} offen offset:{1024+640*t}")
    k("s_endpgm")
    k.label("Lq_misc")
    k("s_cmp_ge_u32 s2, 256", "s_cbranch_scc1 Lq_end")
    k("s_waitcnt lgkmcnt(0)")
    RX, RW = c.RX, c.RW
    srd(k, RX, sX, S * D * 2)
    srd(k, RW, sGW, D * 2)
    srd(k, RO, sWS, 0x2000, FL_OFF)
    srd(k, 40, sWS, S * 4, G_OFF)
    k(f"s_sub_u32 s{sT}, s2, 240")
    k(f"v_and_b32 v3, 15, v{vL}", f"v_lshrrev_b32 v4, 4, v{vL}", f"v_lshlrev_b32 v5, 4, v3")
    for u in range(5):
        k(f"buffer_load_dwordx4 {v(8+4*u,4)}, v5, {s(RW,4)}, 0 offen offset:{256*u}")
    k(f"s_lshl_b32 s49, s{sT}, 7", f"s_lshl_b32 s50, s{sW}, 4", f"s_add_u32 s49, s49, s50",
      f"v_add_u32 v6, s49, v4", f"v_lshlrev_b32 v7, 2, v6", f"v_mul_u32_u24 v6, 1280, v6", f"v_add_u32 v6, v6, v5")
    for p in range(4):
        k(f"s_mov_b32 s50, {p*4*1280}")
        for u in range(5):
            k(f"buffer_load_dwordx4 {v(32+p*20+4*u,4)}, v6, {s(RX,4)}, s50 offen offset:{256*u}")
    k("v_mov_b32 v28, 0", "v_lshlrev_b32 v29, 2, v0", f"s_lshl_b32 s50, s{sT}, 11",
      f"buffer_store_dword v28, v29, {s(RO,4)}, s50 offen")
    for p in range(4):
        k(f"s_waitcnt vmcnt({16-5*p})")
        acc = 112 + p
        k(f"v_mov_b32 v{acc}, 0")
        k([f"v_dot2c_f32_bf16 v{acc}, v{32+p*20+u}, v{8+u}" for u in range(20)])
    k("s_nop 2")
    for sh in (8, 4, 2, 1):
        k([f"v_add_f32 v{112+p}, v{112+p}, v{112+p} row_ror:{sh} row_mask:0xf bank_mask:0xf" for p in range(4)])
    k([f"v_mul_f32 v{112+p}, {f32(-math.log2(math.e))}, v{112+p}" for p in range(4)], [f"v_exp_f32 v{112+p}, v{112+p}" for p in range(4)],
      [f"v_add_f32 v{112+p}, 1.0, v{112+p}" for p in range(4)], [f"v_rcp_f32 v{112+p}, v{112+p}" for p in range(4)],
      [f"buffer_store_dword v{112+p}, v7, s[40:43], 0 offen offset:{p*16}" for p in range(4)])
    k.label("Lq_end")
    k("s_endpgm")
    return k.l, dict(grid=256, block=512, lds=81920, vgpr=128)

def gen_attn(k):
    RKV, RQ, RG, RO, RF = 28, 32, 36, 40, 76
    sHEAD, sQB, sT, sT2, sM0, sSO, sCNT, sDEL, sSLOT, sQT = 44, 45, 46, 47, 48, 49, 50, 51, 52, 53
    sHI, sVM, sF, sKH, sPAR = 54, 60, 62, 64, 65
    vR, vHI, vDA, vG = 3, 4, 5, 6
    AK, AH, AV, BK, BH, BV = 8, 9, 10, 11, 12, 13
    Q1, Q2 = (16, 24), (20, 28)
    KL, KH, V1, V2, P = 32, 36, 40, 44, 48
    O, SS = (56, 72), (88, 104)
    T0 = 120
    MASK = OPT.get("mask", "1") == "1"
    def rdV(dst, adr, off):
        r = f"ds_read_b128 {v(dst,4)}, v{adr} offset:{off}"
        return [f"s_mov_b64 exec, {s(sVM,2)}", r, "s_mov_b64 exec, -1"] if OPT.get("vmask", "1") == "1" else [r]
    def rdH(adr, off):
        r = f"ds_read_b64 {v(KH,2)}, v{adr} offset:{off}"
        return [f"s_mov_b64 exec, {s(sHI,2)}", r, "s_mov_b64 exec, -1"] if MASK else [r]
    k("s_setprio 3")
    k(f"s_and_b32 s{sT}, s2, 7", f"s_lshl_b32 s{sT}, s{sT}, 2", f"s_bfe_u32 s{sT2}, s2, 0x20003",
      f"s_add_u32 s{sHEAD}, s{sT}, s{sT2}", f"s_lshr_b32 s{sQB}, s2, 5", f"s_and_b32 s{sPAR}, s{sHEAD}, 1",
      f"s_lshr_b32 s{sKH}, s{sW}, 2", f"s_and_b32 s{sQT}, s{sW}, 3", f"s_lshl_b32 s{sQT}, s{sQT}, 1",
      f"s_lshl_b32 s{sT}, s{sQB}, 3", f"s_add_u32 s{sQT}, s{sQT}, s{sT}")
    k(f"v_and_b32 v{vR}, 31, v{vL}", f"v_lshrrev_b32 v{vHI}, 5, v{vL}", f"v_lshlrev_b32 v{vDA}, 4, v{vL}")
    k(f"s_mul_i32 s{sM0}, s{sW}, {TB}", f"s_mul_i32 s{sSO}, s{sW}, {PT}", f"s_mul_i32 s{sT}, s{sPAR}, 2304", f"s_add_u32 s{sSO}, s{sSO}, s{sT}")
    k(f"s_lshr_b32 s{sT2}, s{sHEAD}, 1", f"s_mul_i32 s{sT}, s{sT2}, {PAIRB}", f"s_mul_i32 s{sT2}, s{sT2}, {QPAIR}")
    k("s_waitcnt lgkmcnt(0)")
    srd(k, RKV, sWS, PAIRB, KV_OFF, sT)
    srd(k, RQ, sWS, QPAIR, Q_OFF, sT2)
    def dma():
        return [f"buffer_load_dwordx4 v{vDA}, {s(RKV,4)}, s{sSO} offen offset:{o} lds" for o in (0, 1024, 1792)]
    k(f"s_mov_b32 m0, s{sM0}", "s_nop 0", dma())
    k(f"s_mul_i32 s{sT}, s{sQT}, {QT}", f"s_mul_i32 s{sT2}, s{sPAR}, 1536", f"s_add_u32 s56, s{sT}, s{sT2}",
      f"s_lshl_b32 s{sT2}, s{sPAR}, 3", f"s_add_u32 s57, s{sT}, s{sT2}", f"v_lshlrev_b32 v7, 4, v{vR}")
    for b in range(2):
        k(f"buffer_load_dwordx4 {v(Q1[b],4)}, v{vDA}, {s(RQ,4)}, s56 offen offset:{b*QT}",
          f"buffer_load_dwordx2 {v(Q2[b],2)}, v7, {s(RQ,4)}, s57 offen offset:{1024 + b*QT}")
    srd(k, RG, sWS, S * 4, G_OFF)
    k(f"s_add_u32 s{sQT}, s{sQT}, s{sKH}", f"s_lshl_b32 s{sT2}, s{sQT}, 7", f"v_lshlrev_b32 v14, 2, v{vR}",
      f"buffer_load_dword v{vG}, v14, {s(RG,4)}, s{sT2} offen")
    k(f"s_add_u32 m0, s{sM0}, {SLOT}", f"s_add_u32 s{sSO}, s{sSO}, {8*PT}", dma())
    srd(k, RO, sWS, HO_SIZE, HO_OFF)
    srd(k, RF, sWS, 0x2000, FL_OFF)
    k(f"s_cmp_eq_u32 s{sPAR}, 0", csel(56, 0, 1792), csel(57, 2304, 8), csel(58, 1024, 512), f"s_mul_i32 s59, s{sKH}, {4*TB}")
    k(f"v_add_u32 v14, s56, v{vDA}", f"v_add_u32 v15, s57, v7", f"v_add_u32 v{AK}, s59, v14", f"v_add_u32 v{AH}, s59, v15",
      f"s_add_u32 s58, s58, s59", f"v_mul_u32_u24 v{AV}, 320, v{vHI}", f"v_add3_u32 v{AV}, v{AV}, v7, s58",
      f"v_add_u32 v{BK}, {SLOT}, v{AK}", f"v_add_u32 v{BH}, {SLOT}, v{AH}", f"v_add_u32 v{BV}, {SLOT}, v{AV}")
    k(f"s_mov_b32 s{sHI}, -1", f"s_mov_b32 s{sHI+1}, 0", f"s_mov_b32 s{sVM}, 0xfffff", f"s_mov_b32 s{sVM+1}, 0xfffff")
    k(f"v_mov_b32 v{KH}, 0", f"v_mov_b32 v{KH+1}, 0", f"v_mov_b32 v{KH+2}, 0x3f80", f"v_mov_b32 v{KH+3}, 0")
    k([f"v_mov_b32 v{Q2[b]+i}, 0" for b in range(2) for i in (2, 3)])
    k(f"v_cmp_eq_u32 vcc, 20, v{vR}", f"v_mov_b32 v1, 0x3f803f80", [f"v_cndmask_b32 v{V1+i}, 0, v1, vcc" for i in range(8)])
    k([f"v_mov_b32 v{O[0]+i}, 0" for i in range(32)], [f"v_mov_b32 v{P+i}, 0" for i in range(4, 8)])
    k("s_waitcnt vmcnt(3)")
    k([f"v_cndmask_b32 v{Q2[b]+i}, 0, v{Q2[b]+i}, {s(sHI,2)}" for b in range(2) for i in range(2)])
    k("s_barrier", "STAMP0")
    k(f"ds_read_b128 {v(KL,4)}, v14", rdH(15, 0), rdV(V1, AV, 0), "s_waitcnt lgkmcnt(1)")
    k(mfma32(SS[0], KL, Q1[0], True), mfma32(SS[1], KL, Q1[1], True), mfma32(SS[0], KH, Q2[0]), mfma32(SS[1], KH, Q2[1]))
    k(f"ds_read_b128 {v(KL,4)}, v{AK}", rdH(AH, 0))
    for b in range(2):
        k(f"v_max3_f32 v{T0+b}, v{SS[b]}, v{SS[b]+1}, v{SS[b]+2}")
        for i in range(3, 15, 2):
            k(f"v_max3_f32 v{T0+b}, v{T0+b}, v{SS[b]+i}, v{SS[b]+i+1}")
        k(f"v_max_f32 v{T0+b}, v{T0+b}, v{SS[b]+15}", f"v_mov_b32 v{T0+2+b}, v{T0+b}")
    for b in range(2): k(f"v_permlane32_swap_b32 v{T0+b}, v{T0+2+b}")
    for b in range(2): k(f"v_max_f32 v{T0+b}, v{T0+b}, v{T0+2+b}")
    for b in range(2): k(f"v_cvt_pk_bf16_f32 v{T0+b}, -v{T0+b}, 0")
    for b in range(2): k(f"v_cndmask_b32 v{Q2[b]+2}, 0, v{T0+b}, {s(sHI,2)}")
    k([f"v_mov_b32 v{SS[1]+i}, 0" for i in range(12, 16)])
    k("s_waitcnt lgkmcnt(0)", mfma32(SS[0], KL, Q1[0], True), mfma32(SS[0], KH, Q2[0]))
    k(f"s_mov_b32 s{sCNT}, 0", f"s_mov_b32 s{sSLOT}, {2*SLOT}", f"s_setprio {OPT.get('aprio', 1)}", "STAMP1", "s_nop 4")
    if OPT.get("yprio"): k(f"s_cmp_lt_u32 s{sW}, 4", "s_cbranch_scc1 La_p", f"s_setprio {OPT['yprio']}", "La_p:")
    k(".p2align 6")
    k.label("La_loop")
    for u in range(8):
        b, t = u & 1, u >> 1
        Sc, Sn = SS[b], SS[b ^ 1]
        ex = lambda g: [f"v_exp_f32 v{Sc+4*g+c}, v{Sc+4*g+c}" for c in range(4)]
        cv = lambda Sx, g: [f"v_cvt_pk_bf16_f32 v{P+2*g+c}, v{Sx+4*g+2*c}, v{Sx+4*g+2*c+1}" for c in range(2)]
        nx = lambda cur, nxt: (cur, (t + 1) * TB) if t < 3 else (nxt, 0)
        if u == 6 and OPT.get("nobar") != "2":
            k("s_waitcnt vmcnt(0)", "s_barrier" if not OPT.get("nobar") else "s_nop 0")
            k(f"s_cmp_ge_u32 s{sCNT}, 6", "s_cbranch_scc1 La_nodma")
            k(f"s_add_u32 m0, s{sM0}, s{sSLOT}", f"s_add_u32 s{sSO}, s{sSO}, {8*PT}", dma())
            k.label("La_nodma")
        if b == 0:
            r, o = nx(AK, BK)
            k(cv(Sn, 3), mfma32(Sn, KL, Q1[1], True), f"ds_read_b128 {v(KL,4)}, v{r} offset:{o}", ex(0))
            k(cv(Sc, 0), mfma32(O[1], V2, P + 4), rdV(V2, AV, t * TB + 640), ex(1))
            k(cv(Sc, 1), mfma32(Sn, KH, Q2[1]), rdH(*nx(AH, BH)), ex(2))
            k(cv(Sc, 2), "s_waitcnt lgkmcnt(3)", mfma32(O[0], V1, P), ex(3))
        else:
            k(cv(Sn, 3), "s_waitcnt lgkmcnt(1)", mfma32(Sn, KL, Q1[0], True), ex(0))
            k(cv(Sc, 0), mfma32(O[0], V2, P + 4), ex(1))
            k(cv(Sc, 1), "s_waitcnt lgkmcnt(0)", mfma32(Sn, KH, Q2[0]), ex(2))
            k(cv(Sc, 2), mfma32(O[1], V1, P), rdV(V1, *nx(AV, BV)), ex(3))
    k(f"s_add_u32 s{sCNT}, s{sCNT}, 1",
      f"s_cmp_eq_u32 s{sSLOT}, 0", csel(sDEL, (-2*SLOT) & 0xffffffff, SLOT),
      f"v_mov_b32 v{AK}, v{BK}", f"v_mov_b32 v{AH}, v{BH}", f"v_mov_b32 v{AV}, v{BV}",
      f"v_add_u32 v{BK}, s{sDEL}, v{BK}", f"v_add_u32 v{BH}, s{sDEL}, v{BH}", f"v_add_u32 v{BV}, s{sDEL}, v{BV}",
      f"s_add_u32 s{sSLOT}, s{sSLOT}, {SLOT}", f"s_cmp_eq_u32 s{sSLOT}, {3*SLOT}", f"s_cselect_b32 s{sSLOT}, 0, s{sSLOT}",
      f"s_cmp_lt_u32 s{sCNT}, 8", "s_cbranch_scc1 La_loop")
    k([f"v_cvt_pk_bf16_f32 v{P+6+c}, v{SS[1]+12+2*c}, v{SS[1]+12+2*c+1}" for c in range(2)])
    k("s_setprio 3", "s_nop 0", mfma32(O[1], V2, P + 4), "STAMP2")
    k(f"s_lshr_b32 s{sT}, s{sHEAD}, 3", f"s_mul_i32 s{sT}, s{sT}, 5", f"s_add_u32 s{sT}, s{sT}, 54",
      f"s_bfe_u32 s{sT2}, s{sHEAD}, 0x20001", f"s_add_u32 s56, s{sT}, s{sT2}", f"s_lshl_b32 s56, s56, 10",
      f"s_lshl_b32 s58, s{sPAR}, 9", f"s_add_u32 s56, s56, s58",
      f"s_add_u32 s59, s{sT}, 4", f"s_lshl_b32 s59, s59, 10", f"s_lshl_b32 s58, s{sT2}, 8", f"s_add_u32 s59, s59, s58",
      f"s_lshl_b32 s58, s{sPAR}, 3", f"s_add_u32 s59, s59, s58",
      f"s_mul_i32 s58, s{sQT}, {2*HO_ROW}", f"s_add_u32 s56, s56, s58", f"s_add_u32 s59, s59, s58",
      f"s_lshl_b32 s57, s{sQB}, 8", f"s_add_u32 s57, s57, {16*256}")
    k(f"v_lshrrev_b32 v{T0+4}, 4, v{vR}", f"v_mul_u32_u24 v{T0+4}, {HO_ROW}, v{T0+4}", f"v_and_b32 v{T0+5}, 15, v{vR}",
      f"v_lshl_add_u32 v{T0+4}, v{T0+5}, 4, v{T0+4}", f"v_lshl_add_u32 v{T0+5}, v{vHI}, 8, v{T0+4}")
    k(f"s_and_b32 s{sT}, s{sW}, 3", f"s_mul_i32 s{sT}, s{sT}, 3072", f"v_add_u32 v14, s{sT}, v{vDA}", f"v_add_u32 v15, {2*SLOT}, v14")
    k(f"s_cmp_lg_u32 s{sKH}, 0", "s_cbranch_scc1 La_x1")
    k([f"ds_write_b128 v14, {v(O[1]+4*i,4)} offset:{1024*i}" for i in range(3)], "s_waitcnt lgkmcnt(0)", "s_barrier",
      [f"ds_read_b128 {v(SS[0]+4*i,4)}, v15 offset:{1024*i}" for i in range(3)], "s_waitcnt lgkmcnt(0)",
      [f"v_add_f32 v{O[0]+i}, v{O[0]+i}, v{SS[0]+i}" for i in range(12)], "s_branch La_fin")
    k.label("La_x1")
    k([f"ds_write_b128 v15, {v(O[0]+4*i,4)} offset:{1024*i}" for i in range(3)], "s_waitcnt lgkmcnt(0)", "s_barrier",
      [f"ds_read_b128 {v(SS[0]+4*i,4)}, v14 offset:{1024*i}" for i in range(3)], "s_waitcnt lgkmcnt(0)",
      [f"v_add_f32 v{O[0]+i}, v{O[1]+i}, v{SS[0]+i}" for i in range(12)])
    OO = O[0]
    k.label("La_fin")
    k(f"v_mov_b32 v{T0}, v{OO+8}", f"v_mov_b32 v{T0+1}, v{OO+8}", f"v_permlane32_swap_b32 v{T0}, v{T0+1}")
    k(f"s_cmp_lg_u32 s{sCNT}, 8", "s_cbranch_scc1 La_ok")
    k(f"v_add_f32 v{T0+2}, abs(v{OO+8}), abs(v{OO+9})", f"v_add_f32 v{T0+3}, abs(v{OO+10}), abs(v{OO+11})",
      f"v_add_f32 v{T0+2}, v{T0+2}, v{T0+3}", [f"v_add_f32 v{T0+2}, v{T0+2}, abs(v{OO+i})" for i in range(8)])
    k(f"v_mov_b32 v{T0+3}, {f32(2.0**100)}", f"v_mov_b32 v{T0+6}, {f32(2.0**-30)}", f"v_mov_b32 v{T0+7}, {f32(2.0**126)}",
      f"v_cmp_nlt_f32 {s(sVM,2)}, v{T0+1}, v{T0+3}", f"v_cmp_ngt_f32 {s(sF,2)}, v{T0+1}, v{T0+6}", f"v_cmp_nlt_f32 vcc, v{T0+2}, v{T0+7}",
      f"s_or_b64 {s(sF,2)}, {s(sF,2)}, {s(sVM,2)}", f"s_or_b64 {s(sF,2)}, {s(sF,2)}, vcc", "s_cbranch_scc1 La_slow")
    k.label("La_ok")
    k(f"v_rcp_f32 v{T0+2}, v{T0+1}", f"v_mul_f32 v{T0+2}, v{T0+2}, v{vG}")
    k([f"v_mul_f32 v{OO+i}, v{OO+i}, v{T0+2}" for i in range(12)])
    k([f"v_cvt_pk_bf16_f32 v{P+i}, v{OO+2*i}, v{OO+2*i+1}" for i in range(6)])
    k(f"buffer_store_dwordx4 {v(P,4)}, v{T0+5}, {s(RO,4)}, s56 offen{SC}")
    k(f"s_mov_b64 exec, {s(sHI,2)}", f"buffer_store_dwordx2 {v(P+4,2)}, v{T0+4}, {s(RO,4)}, s59 offen{SC}", "s_mov_b64 exec, -1")
    k("STAMP3")
    signal(k, RF, 57, "La_sig")
    k("s_endpgm")
    k.label("La_slow")
    M, MN, AL = 14, 15, 7
    S0 = SS[0]
    k(f"s_mov_b32 s{sCNT}, 9", f"s_mul_i32 s{sSO}, s{sPAR}, 2304", f"s_cmp_eq_u32 s{sKH}, 0", "s_cbranch_scc1 La_s0")
    k([f"v_mov_b32 v{Q1[0]+i}, v{Q1[1]+i}" for i in range(8)])
    k.label("La_s0")
    k(f"v_mov_b32 v{Q2[0]+2}, 0", f"v_mov_b32 v{M}, 0xff7fffff", [f"v_mov_b32 v{OO+i}, 0" for i in range(16)])
    k(f"s_cmp_eq_u32 s{sPAR}, 0", csel(sT, 0, 1792), csel(sT2, 2304, 8), csel(sDEL, 1024, 512),
      f"s_mov_b32 s{sVM}, 0xfffff", f"s_mov_b32 s{sVM+1}, 0xfffff",
      f"v_add_u32 v{AK}, s{sT}, v{vDA}", f"v_lshlrev_b32 v{AV}, 4, v{vR}", f"v_add_u32 v{AH}, s{sT2}, v{AV}",
      f"v_mul_u32_u24 v{BV}, 320, v{vHI}", f"v_add3_u32 v{AV}, v{AV}, v{BV}, s{sDEL}", f"s_mov_b32 s{sSLOT}, 0")
    k.label("La_sloop")
    k(f"buffer_load_dwordx4 {v(KL,4)}, v{AK}, {s(RKV,4)}, s{sSO} offen",
      f"buffer_load_dwordx2 {v(KH,2)}, v{AH}, {s(RKV,4)}, s{sSO} offen",
      f"s_mov_b64 exec, {s(sVM,2)}",
      f"buffer_load_dwordx4 {v(V1,4)}, v{AV}, {s(RKV,4)}, s{sSO} offen",
      f"buffer_load_dwordx4 {v(V2,4)}, v{AV}, {s(RKV,4)}, s{sSO} offen offset:640",
      "s_mov_b64 exec, -1", "s_waitcnt vmcnt(0)")
    k(mfma32(S0, KL, Q1[0], True), mfma32(S0, KH, Q2[0]))
    k(f"v_max3_f32 v{MN}, v{S0}, v{S0+1}, v{M}")
    for i in range(2, 16, 2):
        k(f"v_max3_f32 v{MN}, v{MN}, v{S0+i}, v{S0+i+1}")
    k(f"v_mov_b32 v{AL}, v{MN}", f"v_permlane32_swap_b32 v{MN}, v{AL}", f"v_max_f32 v{MN}, v{MN}, v{AL}",
      f"v_sub_f32 v{AL}, v{M}, v{MN}", f"v_exp_f32 v{AL}, v{AL}", f"v_mov_b32 v{M}, v{MN}")
    for i in range(16):
        k(f"v_sub_f32 v{S0+i}, v{S0+i}, v{MN}", f"v_exp_f32 v{S0+i}, v{S0+i}", f"v_mul_f32 v{OO+i}, v{OO+i}, v{AL}")
    k([f"v_cvt_pk_bf16_f32 v{P+i}, v{S0+2*i}, v{S0+2*i+1}" for i in range(8)])
    k(mfma32(OO, V1, P), mfma32(OO, V2, P + 4))
    k(f"s_add_u32 s{sSO}, s{sSO}, {PT}", f"s_add_u32 s{sSLOT}, s{sSLOT}, 1", f"s_cmp_lt_u32 s{sSLOT}, 64", "s_cbranch_scc1 La_sloop")
    k("s_branch La_fin")

def gen_ffn(k, mode):
    c = XW(k, 2, 2, 3, F * 2)
    RG, RO, RF, RT, ROUT = 36, 40, 76, 80, 36
    sT, sT2, sRB, sCB = c.sT, c.sT2, c.sRB, c.sCB
    sB = 54
    VG = 57
    k("s_setprio 2")
    k(f"s_sub_u32 s{sB}, s2, 256", f"s_cmp_ge_u32 s{sB}, 224", "s_cbranch_scc1 Lg_wt")
    k(f"s_and_b32 s{sT}, s{sB}, 7", f"s_lshr_b32 s{sT2}, s{sB}, 3",
      f"s_lshr_b32 s{sCB}, s{sT}, 1", f"s_mul_i32 s{sCB}, s{sCB}, 28", f"s_add_u32 s{sCB}, s{sCB}, s{sT2}",
      f"s_and_b32 s{sRB}, s{sT}, 1", f"s_lshl_b32 s{sRB}, s{sRB}, 3", f"s_and_b32 s{sT2}, s{sCB}, 7",
      f"s_add_u32 s{sRB}, s{sRB}, s{sT2}", f"s_lshr_b32 s{sCB}, s{sCB}, 3")
    c.setup_dma()
    k("s_waitcnt lgkmcnt(0)")
    srd(k, c.RX, sX, S * D * 2)
    k(f"s_cmp_ge_u32 s{sW}, 4", f"s_cselect_b32 s{c.RW}, s{sWU}, s{sWG}", f"s_cselect_b32 s{c.RW+1}, s{sWU+1}, s{sWG+1}",
      f"s_mov_b32 s{c.RW+2}, {D*F*2}", f"s_mov_b32 s{c.RW+3}, 0x00020000")
    c.prologue_dma()
    srd(k, RG, sWS, S * 4, G_OFF)
    srd(k, RO, sWS, HO_SIZE, HO_OFF)
    srd(k, RF, sWS, 0x2000, FL_OFF)
    c.setup_reads()
    k(f"s_lshl_b32 s{sT}, s{sRB}, 9", f"s_lshl_b32 s{sT2}, s{c.sWM}, 8", f"s_add_u32 s{sT}, s{sT}, s{sT2}", f"v_lshlrev_b32 v5, 2, v3",
      f"buffer_load_dword v{VG}, v5, {s(RG,4)}, s{sT} offen", f"buffer_load_dword v{VG+1}, v5, {s(RG,4)}, s{sT} offen offset:128")
    c.vm.add("g", 2)
    k(f"s_lshl_b32 s{sT}, s{sRB}, 3", f"s_lshl_b32 s{sT2}, s{c.sWM}, 2", f"s_add_u32 s{sT}, s{sT}, s{sT2}", f"s_mul_i32 s{sT}, s{sT}, {HO_ROW}",
      f"s_lshl_b32 s{sT2}, s{sCB}, 2", f"s_add_u32 s{sT2}, s{sT2}, s{c.sWN}", f"s_mov_b32 s57, s{sT2}", f"s_lshl_b32 s{sT2}, s{sT2}, 10",
      f"s_add_u32 s55, s{sT}, s{sT2}", f"s_add_u32 s56, s55, {2*HO_ROW}", f"s_lshl_b32 s58, s{sRB}, 8")
    k(f"v_lshrrev_b32 v5, 4, v3", f"v_mul_u32_u24 v5, {HO_ROW}, v5", f"v_and_b32 v6, 15, v3", f"v_lshl_add_u32 v5, v6, 4, v5",
      f"v_lshl_add_u32 v{VG+2}, v4, 8, v5")
    k("s_setprio 0")
    c.loop(True)
    k("s_setprio 2")
    k(f"s_cmp_ge_u32 s57, 54", "s_cbranch_scc1 Lg_nost")
    k(f"v_sub_f32 v{VG}, 1.0, v{VG}", f"v_sub_f32 v{VG+1}, 1.0, v{VG+1}")
    for mt in range(2):
        g_, u_ = c.ACC + mt*32, c.ACC + mt*32 + 16
        for t in range(2):
            tt = 16 + (mt*2+t)*4
            k([f"v_mul_f32 v{g_+8*t+q}, v{g_+8*t+q}, v{VG+mt}" for q in range(8)])
            k([f"v_mul_f32 v{g_+8*t+q}, v{g_+8*t+q}, v{u_+8*t+q}" for q in range(8)])
            k([f"v_cvt_pk_bf16_f32 v{tt+q}, v{g_+8*t+2*q}, v{g_+8*t+2*q+1}" for q in range(4)])
            k(f"buffer_store_dwordx4 {v(tt,4)}, v{VG+2}, {s(RO,4)}, s{55+mt} offen offset:{512*t}{SC}")
    k.label("Lg_nost")
    signal(k, RF, 58, "Lg_sig")
    k("s_branch Lg_dn")
    k.label("Lg_wt")
    k("s_waitcnt lgkmcnt(0)")
    RD, RWO = c.RX, c.RW
    srd(k, RD, sWD, F * D * 2)
    srd(k, RWO, sWO, D * D * 2)
    srd(k, RO, sWS, HO_SIZE, HO_OFF)
    srd(k, RF, sWS, 0x2000, FL_OFF)
    srd(k, RT, sWS, WT_SIZE, WT_OFF)
    k(f"s_sub_u32 s{sT}, s{sB}, 224", f"s_lshl_b32 s{sT}, s{sT}, 3", f"s_add_u32 s{sT}, s{sT}, s{sW}", f"v_lshlrev_b32 v8, 4, v{vL}", f"s_mov_b32 s{sT2}, {WT_CB}")
    for n in range(5):
        k(f"v_add_u32 v3, {64*n}, v{vL}", f"v_mul_u32_u24 v4, 820, v3", f"v_lshrrev_b32 v4, 16, v4", f"v_mul_u32_u24 v5, 80, v4", f"v_sub_u32 v3, v3, v5",
          f"v_mul_u32_u24 v5, 6554, v3", f"v_lshrrev_b32 v5, 16, v5", f"v_mul_u32_u24 v6, 10, v5", f"v_sub_u32 v3, v3, v6",
          f"v_mul_lo_u32 v5, v5, s{sT2}", f"v_mul_u32_u24 v4, 160, v4", f"v_lshlrev_b32 v3, 4, v3", f"v_add3_u32 v{10+n}, v3, v4, v5")
    for p in range(3):
        lab = f"Lg_w{p}"
        k(f"s_add_u32 s55, s{sT}, {256*p}", f"s_mul_i32 s{60+p}, s55, 640")
        if p == 2: k(f"s_mov_b32 s{60+p}, {WT_SIZE}", f"s_cmp_ge_u32 s55, 592", f"s_cbranch_scc1 {lab}_e")
        if p == 1: k(f"s_cmp_ge_u32 s55, 432", f"s_cbranch_scc1 {lab}_o")
        if p < 2:
            k(f"s_mul_i32 s56, s55, 5120")
            k([f"buffer_load_dwordx4 {v(16+p*20+4*n,4)}, v8, {s(RD,4)}, s56 offen offset:{1024*n}" if n < 4 else
               [f"s_add_u32 s56, s56, 4096", f"buffer_load_dwordx4 {v(16+p*20+4*n,4)}, v8, {s(RD,4)}, s56 offen"] for n in range(5)])
            if p == 1: k(f"s_branch {lab}_e")
        if p >= 1:
            k.label(f"{lab}_o")
            k(f"s_sub_u32 s55, s55, 432", f"s_mul_i32 s56, s55, 5120",
              f"s_mul_i32 s57, s55, 1639", f"s_lshr_b32 s57, s57, 16", f"s_mul_i32 s58, s57, 40", f"s_sub_u32 s55, s55, s58",
              f"s_mul_i32 s58, s55, 52429", f"s_lshr_b32 s58, s58, 18", f"s_mul_i32 s59, s58, 5", f"s_sub_u32 s55, s55, s59",
              f"s_mul_i32 s57, s57, 40",
              f"s_lshl_b32 s59, s58, 2", f"s_add_u32 s59, s59, s55",
              f"s_and_b32 s63, s58, 4", f"s_and_b32 s64, s58, 1", f"s_lshl_b32 s64, s64, 1", f"s_add_u32 s63, s63, s64",
              f"s_bfe_u32 s64, s58, 0x10001", f"s_add_u32 s63, s63, s64", f"s_add_u32 s63, s63, 32",
              f"s_cmp_eq_u32 s55, 4", f"s_cselect_b32 s59, s63, s59", f"s_add_u32 s57, s57, s59", f"s_add_u32 s57, s57, 432",
              f"s_mul_i32 s{60+p}, s57, 640")
            k([f"buffer_load_dwordx4 {v(16+p*20+4*n,4)}, v8, {s(RWO,4)}, s56 offen offset:{1024*n}" if n < 4 else
               [f"s_add_u32 s56, s56, 4096", f"buffer_load_dwordx4 {v(16+p*20+4*n,4)}, v8, {s(RWO,4)}, s56 offen"] for n in range(5)])
        k.label(f"{lab}_e")
    k("s_waitcnt vmcnt(0)")
    for p in range(3):
        k([f"buffer_store_dwordx4 {v(16+p*20+4*n,4)}, v{10+n}, {s(RT,4)}, s{60+p} offen{SC}" for n in range(5)])
    k(f"s_movk_i32 s58, {24*256}")
    signal(k, RF, 58, "Lg_sig2")
    k.label("Lg_dn")
    if mode == "nodn":
        k("s_endpgm"); return
    srd(k, RT, sWS, WT_SIZE, WT_OFF)
    srd(k, ROUT, sOUT, S * D * 2)
    sM0, sKA, sWA, sKH, sRG, sEX, sFH, sFO, sFW = 48, 49, 50, 52, 53, 56, 58, 59, 60
    DA, WA = 8, 9
    AF, WF, ACC = 16, 56, 96
    NS, NST = 8, 37
    k(f"s_and_b32 s{sT}, s{sB}, 7", f"s_lshr_b32 s{sT2}, s{sB}, 3",
      f"s_and_b32 s{sRB}, s{sT}, 3", f"s_lshl_b32 s{sRB}, s{sRB}, 3", f"s_and_b32 s55, s{sT2}, 7", f"s_add_u32 s{sRB}, s{sRB}, s55",
      f"s_lshr_b32 s{sCB}, s{sT}, 2", f"s_lshl_b32 s{sCB}, s{sCB}, 2", f"s_lshr_b32 s55, s{sT2}, 3", f"s_add_u32 s{sCB}, s{sCB}, s55")
    k(f"s_lshr_b32 s{sKH}, s{sW}, 2", f"s_and_b32 s{sRG}, s{sW}, 3", f"v_lshlrev_b32 v{DA}, 4, v{vL}",
      f"s_mul_i32 s{sM0}, s{sW}, 1280", f"s_mul_i32 s{sWA}, s{sCB}, {WT_CB}", f"s_add_u32 s{sWA}, s{sWA}, s{sM0}",
      f"s_mov_b32 s{sEX}, -1", f"s_mov_b32 s{sEX+1}, 0xff",
      f"s_lshl_b32 s{sT}, s{sRB}, 2", f"s_add_u32 s{sT}, s{sT}, s{sRG}", f"s_mul_i32 s{sT}, s{sT}, {HO_ROW}",
      f"s_lshl_b32 s{sT2}, s{sKH}, 10", f"s_add_u32 s{sKA}, s{sT}, s{sT2}",
      f"s_lshr_b32 s{sFH}, s{sRB}, 1", f"s_lshl_b32 s{sFH}, s{sFH}, 8",
      f"s_lshr_b32 s{sFO}, s{sRB}, 2", f"s_lshl_b32 s{sFO}, s{sFO}, 8", f"s_add_u32 s{sFO}, s{sFO}, {16*256}", f"s_movk_i32 s{sFW}, {24*256}")
    k(f"v_lshrrev_b32 v3, 5, v{vL}", f"v_lshlrev_b32 v3, 4, v3", f"v_bfe_u32 v4, v{vL}, 4, 1", f"v_lshl_add_u32 v3, v4, 2, v3",
      f"v_bfe_u32 v4, v{vL}, 2, 2", f"s_lshl_b32 s{sT}, s{sKH}, 5", f"v_add3_u32 v3, v3, v4, s{sT}", f"v_mul_u32_u24 v3, 160, v3",
      f"v_and_b32 v4, 3, v{vL}", f"v_lshl_add_u32 v{WA}, v4, 3, v3", f"v_add_u32 v{WA+1}, 40960, v{WA}")
    vm = VM()
    def dw(st):
        vm.add(("w", st), 2)
        return [f"s_add_u32 m0, s{sM0}, {(st % NS)*10240}", f"s_add_u32 s{sT}, s{sWA}, {st*10240}",
                [f"s_mov_b64 exec, {s(sEX,2)}",
                 f"buffer_load_dwordx4 v{DA}, {s(RT,4)}, s{sT} offen{SC} lds",
                 f"buffer_load_dwordx4 v{DA}, {s(RT,4)}, s{sT} offen offset:640{SC} lds",
                 "s_mov_b64 exec, -1"]]
    def areg(st): return AF + 4 * ((st % 8) if st < 27 else st - 27)
    def da(st):
        vm.add(("a", st))
        return [f"s_add_u32 s{sT2}, s{sKA}, {st*2048}", f"buffer_load_dwordx4 {v(areg(st),4)}, v{DA}, {s(RO,4)}, s{sT2} offen{SC}"]
    def reads(st):
        buf, slot = st & 1, st % NS
        return [f"ds_read_b64_tr_b16 {v(WF+buf*20+nt*4+half*2,2)}, v{WA+(slot>>2)} offset:{(slot&3)*10240+half*8*160+nt*32}" for nt in range(5) for half in range(2)]
    def mf(st): return [mfma16(ACC+nt*4, WF+(st & 1)*20+nt*4, areg(st), st == 0) for nt in range(5)]
    await_flag(k, RF, sFW, 32, "Lg_fw", 62)
    for st in range(7): k(dw(st))
    await_flag(k, RF, sFH, 14, "Lg_fh", 62)
    vm.q = []
    k("STAMP4")
    for st in range(7): k(da(st))
    k(reads(0), "s_setprio 0")
    for st in range(27):
        n = vm.wait(("a", st), ("w", st + 1))
        k(f"s_waitcnt vmcnt({n}) lgkmcnt(0)", "s_barrier")
        k(spread(mf(st), dw(st + 7) + (da(st + 7) if st + 7 < 27 else []) + reads(st + 1), pre=3))
    k("s_setprio 2")
    await_flag(k, RF, sFO, 32, "Lg_fo", 62)
    vm.q = []
    for st in range(27, 37): k(da(st))
    k(dw(34))
    for st in range(27, 37):
        n = vm.wait(("a", st))
        if st == 33:
            n = vm.wait(("w", 36))
            k(f"s_waitcnt vmcnt({n}) lgkmcnt(0)", "s_barrier")
        elif st == 28:
            k(f"s_waitcnt vmcnt({n}) lgkmcnt(0)", "s_barrier", dw(35), dw(36))
        else:
            k(f"s_waitcnt vmcnt({n}) lgkmcnt(0)")
        k(spread(mf(st), reads(st + 1) if st < 36 else []))
    k(f"v_and_b32 v3, 15, v{vL}", f"s_lshl_b32 s{sT}, s{sRG}, 4", f"v_add_u32 v3, s{sT}, v3", f"v_mul_u32_u24 v3, 336, v3",
      f"v_lshrrev_b32 v4, 4, v{vL}", f"v_lshl_add_u32 v3, v4, 4, v3", f"s_mul_i32 s{sT}, s{sKH}, {64*336}", f"v_add_u32 v3, s{sT}, v3")
    k(f"v_mul_u32_u24 v4, 6554, v0", f"v_lshrrev_b32 v4, 16, v4", f"v_mul_u32_u24 v5, 10, v4", f"v_sub_u32 v5, v0, v5",
      f"v_add_u32 v6, 512, v0", f"v_mul_u32_u24 v7, 6554, v6", f"v_lshrrev_b32 v7, 16, v7", f"v_mul_u32_u24 v11, 10, v7", f"v_sub_u32 v6, v6, v11")
    k(f"v_mul_u32_u24 v12, 336, v4", f"v_lshl_add_u32 v12, v5, 5, v12", f"v_mul_u32_u24 v13, 336, v7", f"v_lshl_add_u32 v13, v6, 5, v13",
      f"v_mul_u32_u24 v14, 1280, v4", f"v_lshl_add_u32 v14, v5, 4, v14", f"v_mul_u32_u24 v15, 1280, v7", f"v_lshl_add_u32 v15, v6, 4, v15",
      f"s_mul_i32 s{sT}, s{sRB}, {64*1280}", f"s_mul_i32 s{sT2}, s{sCB}, 160", f"s_add_u32 s{sT}, s{sT}, s{sT2}")
    k("s_barrier")
    k([f"ds_write_b128 v3, {v(ACC+nt*4,4)} offset:{nt*64}" for nt in range(5)])
    k("s_waitcnt lgkmcnt(0)", "s_barrier")
    for rnd, (la, ga) in enumerate(((12, 14), (13, 15))):
        if rnd == 1:
            k(f"s_cmp_ge_u32 s{sW}, 2", "s_cbranch_scc1 Lg_end")
        k(f"ds_read_b128 v[16:19], v{la}", f"ds_read_b128 v[20:23], v{la} offset:16",
          f"ds_read_b128 v[24:27], v{la} offset:{64*336}", f"ds_read_b128 v[28:31], v{la} offset:{64*336+16}", "s_waitcnt lgkmcnt(0)")
        k([f"v_add_f32 v{16+q}, v{16+q}, v{24+q}" for q in range(8)])
        k([f"v_cvt_pk_bf16_f32 v{32+rnd*4+q}, v{16+2*q}, v{17+2*q}" for q in range(4)])
        k(f"buffer_store_dwordx4 {v(32+rnd*4,4)}, v{ga}, {s(ROUT,4)}, s{sT} offen")
    k.label("Lg_end")
    k("s_endpgm")

def gen_mid(mode="both"):
    k = K()
    load_args(k)
    k("s_cmp_ge_u32 s2, 256", "s_cbranch_scc1 Lm_g")
    gen_attn(k)
    k.label("Lm_g")
    k(f"s_cmp_ge_u32 s2, {256 if mode == 'attn' else 512}", "s_cbranch_scc1 Lm_end")
    gen_ffn(k, mode)
    k.label("Lm_end")
    k("s_endpgm")
    return k.l, dict(grid=512, block=512, lds=81920, vgpr=128)

HEAD = open("cdna_kernels/" + NAME + ".s.ref").read().split("; Override launch")[0]
STAMP_OFF = 0x8000000
def add_stamps(lines, idx):
    out = ["    s_memrealtime s[88:89]", "    s_memtime s[94:95]", "    v_lshrrev_b32 v1, 6, v0", "    s_nop 0", "    v_readfirstlane_b32 s87, v1"]
    out += [f"    s_mov_b32 s{r}, 0" for r in (66, 68, 70, 72, 74)]
    for l in lines:
        if l.strip().startswith("STAMP"):
            r = 66 + 2 * int(l.strip()[5:])
            out += [f"    s_memtime s[{r}:{r+1}]"]
        elif l.strip() == "s_endpgm":
            out += ["    s_waitcnt vmcnt(0) lgkmcnt(0)", "    s_memrealtime s[90:91]", "    s_memtime s[92:93]", "    s_load_dwordx2 s[84:85], s[0:1], 80", "    s_waitcnt lgkmcnt(0)",
                    f"    s_add_u32 s76, s84, {STAMP_OFF + idx * 0x80000}", "    s_addc_u32 s77, s85, 0", "    s_mov_b32 s78, 0x80000", "    s_mov_b32 s79, 0x00020000",
                    "    s_lshl_b32 s86, s2, 4", "    s_add_u32 s86, s86, s87", "    s_lshl_b32 s86, s86, 5", "    s_sub_u32 s92, s92, s94"]
            out += [f"    s_sub_u32 s{r}, s{r}, s94" for r in (66, 68, 70, 72, 74)]
            out += ["    s_mov_b64 exec, 1", "    v_mov_b32 v0, s86", "    v_mov_b32 v4, s88", "    v_mov_b32 v5, s90", "    v_mov_b32 v6, s92", "    v_mov_b32 v7, s66",
                    "    v_mov_b32 v8, s68", "    v_mov_b32 v9, s70", "    v_mov_b32 v10, s72", "    v_mov_b32 v11, s74",
                    "    buffer_store_dwordx4 v[4:7], v0, s[76:79], 0 offen", "    buffer_store_dwordx4 v[8:11], v0, s[76:79], 0 offen offset:16", "    s_endpgm"]
        else:
            out.append(l)
    return out

def emit(kernels, verbose=False, stamps=False):
    kernels = [(n, (add_stamps(l, i) if stamps else [x for x in l if not x.strip().startswith("STAMP")], c)) for i, (n, (l, c)) in enumerate(kernels)]
    out = [HEAD.rstrip()]
    for name, (lines, cfg) in kernels:
        out.append(f"; @launch kernel={name} grid=({cfg['grid']},1,1) block=({cfg['block']},1,1) lds={cfg['lds']}")
    out += ['.amdgcn_target "amdgcn-amd-amdhsa--gfx950"', ".text"]
    for name, (lines, cfg) in kernels:
        fixed, n = fix_hazards(lines, verbose)
        out += [f".globl {name}", ".p2align 8", f".type {name},@function", f"{name}:"] + fixed
    out += ['.section .rodata,"a"']
    for name, (lines, cfg) in kernels:
        out += [".p2align 6", f".amdhsa_kernel {name}", f"  .amdhsa_next_free_vgpr {cfg['vgpr']}", "  .amdhsa_next_free_sgpr 96",
                f"  .amdhsa_accum_offset {cfg['vgpr']}", "  .amdhsa_group_segment_fixed_size 0", "  .amdhsa_kernarg_size 88",
                "  .amdhsa_user_sgpr_count 2", "  .amdhsa_user_sgpr_kernarg_segment_ptr 1", "  .amdhsa_system_sgpr_workgroup_id_x 1",
                ".end_amdhsa_kernel"]
    return "\n".join(out) + "\n"

if __name__ == "__main__":
    outp = sys.argv[1] if len(sys.argv) > 1 else "cdna_kernels/" + NAME + ".s"
    OPT.update(dict(x.split("=") for x in sys.argv[2:] if "=" in x))
    txt = emit([("qkv_kernel", gen_qkv()), ("mid_kernel", gen_mid(OPT.get("mid", "both")))], verbose="-v" in sys.argv, stamps="-s" in sys.argv)
    open(outp, "w").write(txt)
    print("wrote", outp, len(txt), "bytes")
```
